```python
import torch

def _softmax(x, axis=-1):
    return torch.softmax(x, dim=axis)
def _gelu(x):
    return torch.nn.functional.gelu(x, approximate="tanh")
def _silu(x):
    return torch.nn.functional.silu(x)
def _sigmoid(x):
    return torch.sigmoid(x)
def _layernorm(x, axis=-1, eps=1e-5):
    m = x.mean(dim=axis, keepdim=True)
    v = x.var(dim=axis, keepdim=True, unbiased=False)
    return (x - m) / torch.sqrt(v + eps)
def _scatter_add(tgt, idx, src, axis=0):
    return tgt.clone().index_add_(axis, idx, src)
def _segment_sum(src, seg, n):
    out = torch.zeros((n,) + src.shape[1:], dtype=src.dtype)
    return out.index_add_(0, seg, src)
def _pad(x, pw):
    flat = tuple(v for pair in reversed(pw) for v in pair)
    return torch.nn.functional.pad(x, flat)

kernel_name = 'gated_mix__sliding_block__swiglu_ffn__prompt'

def setup_inputs():

    _w = (lambda a: (lambda t: t.to(torch.bfloat16) if t.is_floating_point() else t)(torch.as_tensor(a)))
    def _A_setup():
        B, S, D = 1, 2048, 640
        return {
            "x": _w((lambda *s: torch.randn(*s, dtype=torch.bfloat16) * 0.05)(B, S, D)),
            "wqkv": _w((lambda *s: torch.randn(*s, dtype=torch.bfloat16) * 0.8)(D, 3 * D)),
            "wo": _w((lambda *s: torch.randn(*s, dtype=torch.bfloat16) * 0.05)(D, D)),
        }
    _A_in = _A_setup()

    def _B_setup():
        B, S, D, F = 1, 2048, 640, 1536
        return {
            "x": _w((lambda *s: torch.randn(*s, dtype=torch.bfloat16) * 0.05)(B, S, D)),
            "w_gate": _w((lambda *s: torch.randn(*s, dtype=torch.bfloat16) * 0.2)(D, F)),
            "w_up": _w((lambda *s: torch.randn(*s, dtype=torch.bfloat16) * 0.2)(D, F)),
            "w_down": _w((lambda *s: torch.randn(*s, dtype=torch.bfloat16) * 0.2)(F, D)),
        }
    _B_in = _B_setup()

    return {
        "A_x": _A_in["x"],
        "A_wqkv": _A_in["wqkv"],
        "A_wo": _A_in["wo"],
        "B_x": _B_in["x"],
        "B_w_gate": _B_in["w_gate"],
        "B_w_up": _B_in["w_up"],
        "B_w_down": _B_in["w_down"],
        "gate_w": _w((lambda *s: torch.randn(*s, dtype=torch.bfloat16) * 0.05)(640) * 16.0),
    }

def reference(A_x, A_wqkv, A_wo, B_x, B_w_gate, B_w_up, B_w_down, gate_w):
    def _A_ref(x, wqkv, wo):
        B, S, D = x.shape
        H = 32; Dh = D // H; W = 256
        qkv = (lambda x, *d: x.permute(*d))((x @ wqkv).reshape(B, S, 3, H, Dh), 2, 0, 3, 1, 4)
        q, k, v = qkv[0], qkv[1], qkv[2]
        scores = torch.einsum("bhqd,bhkd->bhqk", q, k) * (Dh ** -0.5)
        idx = torch.arange(S)
        mask = (idx[:, None] - idx[None, :] >= 0) & (idx[:, None] - idx[None, :] < W)
        scores = torch.where(mask[None, None], scores, -1e9)
        p = _softmax(scores, axis=-1)
        o = torch.einsum("bhqk,bhkd->bhqd", p, v)
        return (lambda x, *d: x.permute(*d))(o, 0, 2, 1, 3).reshape(B, S, D) @ wo

    def _B_ref(x, w_gate, w_up, w_down):
        g = _silu(x @ w_gate)
        u = x @ w_up
        return (g * u) @ w_down

    x = A_x
    g = _sigmoid((x * gate_w).sum(-1, keepdims=True))
    a = _A_ref(x, A_wqkv, A_wo)
    b = _B_ref(x, B_w_gate, B_w_up, B_w_down)
    return g * a + (1 - g) * b
```

```python
import re
TRANS=('v_exp_f32','v_log_f32','v_rcp_f32','v_rsq_f32','v_sqrt_f32')
def regs(tok,kind):
    tok=tok.strip().lstrip('-')
    tok=tok.replace('abs(','').replace(')','').replace('|','')
    m=re.fullmatch(kind+r'(\d+)',tok)
    if m: return {int(m.group(1))}
    m=re.fullmatch(kind+r'\[(\d+):(\d+)\]',tok)
    if m: return set(range(int(m.group(1)),int(m.group(2))+1))
    if kind=='s' and tok in('vcc','vcc_lo','vcc_hi'): return {106,107}
    return set()
def parse(line):
    l=line.split(';')[0].strip()
    if not l or l.endswith(':') or l.startswith('.'): return None
    p=l.split(None,1); op=p[0]
    ops=[]
    if len(p)>1:
        for o in p[1].split(','):
            ops.append(o.strip().split(' ')[0])
    d=dict(op=op,vr=set(),vw=set(),sr=set(),sw=set(),cls='other',C=set(),AB=set(),m0w=False,n=1,dpp=('quad_perm' in l or 'row_' in l))
    V=lambda o:regs(o,'v'); S=lambda o:regs(o,'s')
    if op=='s_nop': d['n']=int(ops[0])+1
    elif op.startswith('v_mfma'):
        d['cls']='mfma'; d['vw']=V(ops[0]); d['AB']=V(ops[1])|V(ops[2]); d['C']=V(ops[3]); d['vr']=d['AB']|d['C']
        d['passes']=8 if '32x32' in op else 4
    elif op.startswith('v_'):
        d['cls']='valu'
        if op.startswith('v_cmp'):
            d['sw']=S(ops[0]); src=ops[1:]
        elif op.startswith(('v_readfirstlane','v_readlane')):
            d['sw']=S(ops[0]); src=ops[1:]
        elif op.startswith(('v_permlane','v_swap')):
            d['vw']=V(ops[0])|V(ops[1]); src=ops
        else:
            d['vw']=V(ops[0]); src=ops[1:]
            if op.startswith(('v_fmac','v_dot2c')): src=ops
        for o in src: d['vr']|=V(o); d['sr']|=S(o)
    elif op.startswith('buffer_') or op.startswith('global_'):
        d['cls']='vmem'
        d['lds']=' lds' in l
        if op.startswith('buffer_load') and not d['lds']:
            d['vw']=V(ops[0]); src=ops[1:]
        else: src=ops
        for o in src: d['vr']|=V(o); d['sr']|=S(o)
        if op.startswith('buffer_store') and ('x4' in op or 'x3' in op): d['wide']=V(ops[0])
    elif op.startswith('ds_'):
        d['cls']='ds'
        if op.startswith('ds_read'): d['vw']=V(ops[0]); src=ops[1:]
        else: src=ops
        for o in src: d['vr']|=V(o)
    elif op.startswith('s_'):
        d['cls']='salu'
        if ops and ops[0]=='m0': d['m0w']=True
        for o in ops[1:]: d['sr']|=S(o)
        if op.startswith('s_cmp'): d['sr']|=S(ops[0])
    return d
def need(p,c):
    n=0
    if p['cls']=='valu':
        if c['cls']=='mfma' and p['vw']&c['vr']: n=max(n,2)
        if c['cls']=='valu':
            if p['op'].startswith(TRANS) and p['vw']&c['vr']: n=max(n,1)
            if (c['op'].startswith('v_permlane') or c['dpp']) and p['vw']&c['vr']: n=max(n,2)
            if c['op'].startswith(('v_readfirstlane','v_readlane')) and p['vw']&c['vr']: n=max(n,1)
            if p['sw']&c['sr']: n=max(n,2)
            if p['op'].startswith('v_dot2') and p['op']!=c['op'] and p['vw']&(c['vr']|c['vw']): n=max(n,3)
        if c['cls']=='vmem' and p['sw']&c['sr']: n=max(n,5)
        if c['cls']=='salu' and p['sw']&c['sr']: n=max(n,2)
    if p['cls']=='mfma':
        big=p['passes']==8
        if c['cls']=='mfma':
            if p['vw']&c['AB']: n=max(n,12 if big else 8)
            if p['vw']&c['C'] and (p['vw']!=c['C'] or p['passes']!=c['passes']): n=max(n,10 if big else 6)
            if p['vw']&c['vw'] and not (p['vw']&c['C']): n=max(n,12 if big else 8)
        elif c['cls'] in('valu','vmem','ds'):
            if p['vw']&(c['vr']|c['vw']): n=max(n,12 if big else 8)
            if c['cls']=='valu' and p['C']&c['vw']: n=max(n,7 if big else 3)
    if p.get('wide') and p['wide']&c['vw']: n=max(n,2)
    if p['m0w'] and c['cls']=='vmem' and c.get('lds'): n=max(n,1)
    return n
def pad(lines):
    out=[]; hist=[]
    for line in lines:
        c=parse(line)
        if c is None: out.append(line); continue
        dist=0; req=0
        for p in reversed(hist):
            if dist>=20: break
            req=max(req,need(p,c)-dist); dist+=p['n']
        if req>0:
            out.append(f'    s_nop {req-1}'); hist.append(parse(f's_nop {req-1}'))
        out.append(line); hist.append(c)
    return out
class E:
    def __init__(s): s.l=[]
    def __call__(s,t):
        for x in t.strip('\n').split('\n'):
            x=x.strip()
            if x: s.l.append(x if x.endswith(':') else '    '+x)
    def text(s): return '\n'.join(pad(s.l))+'\n'
def vr(a,n): return f'v{a}' if n==1 else f'v[{a}:{a+n-1}]'
def weave(main,fill,start=0,step=1):
    out=[]; f=list(fill);
    for i,m in enumerate(main):
        out.append(m)
        if i>=start and (i-start)%step==0 and f: out.append(f.pop(0))
    out+=f
    return out
def desc(name,vgpr,sgpr=96):
    acc=(vgpr+3)//4*4
    return f""".p2align 6
.amdhsa_kernel {name}
  .amdhsa_next_free_vgpr {vgpr}
  .amdhsa_next_free_sgpr {sgpr}
  .amdhsa_accum_offset {acc}
  .amdhsa_group_segment_fixed_size 0
  .amdhsa_kernarg_size 88
  .amdhsa_user_sgpr_count 2
  .amdhsa_user_sgpr_kernarg_segment_ptr 1
  .amdhsa_system_sgpr_workgroup_id_x 1
.end_amdhsa_kernel
"""
def module(kernels):
    hdr=open('gated_mix__sliding_block__swiglu_ffn__prompt.s.ref').read().split('; Override')[0]
    s=hdr+''.join(f'; @launch kernel={k[0]} grid=({k[2]},1,1) block=({k[3]},1,1) lds={k[4]}\n' for k in kernels)
    s+='.amdgcn_target "amdgcn-amd-amdhsa--gfx950"\n.text\n'
    seen=[]
    for k in kernels:
        if k[0] in seen: continue
        seen.append(k[0])
        s+=f'.globl {k[0]}\n.p2align 8\n.type {k[0]},@function\n{k[0]}:\n{k[1]}'
    s+='.section .rodata,"a"\n'
    seen=[]
    for k in kernels:
        if k[0] in seen: continue
        seen.append(k[0]); s+=desc(k[0],k[5])
    return s
```

```python
from asmlib import *
WS_QKV=0; WS_AP=0x800000; PBS=280*1024; OCT_O=200; WS_WP=0x1200000; WS_G=0x1500000; WS_STAMP=0x1600000
STG=53280; WOFF=32768; WHALF=10256
def srd(e,d,b,n):
    e(f's_mov_b32 s{d}, s{b}\ns_mov_b32 s{d+1}, s{b+1}\ns_mov_b32 s{d+2}, {n}\ns_mov_b32 s{d+3}, 0x20000')
def stamp(e,idx,on,kid,ws=12):
    if not on: return
    e(f'''s_memrealtime s[90:91]
    s_waitcnt lgkmcnt(0)
    v_mov_b32 v254, s90
    s_lshl_b32 s92, s2, 8
    s_lshl_b32 s93, s30, 5
    s_add_u32 s92, s92, s93
    s_add_u32 s92, s92, {WS_STAMP+kid*0x10000+idx*4}
    v_mov_b32 v255, s92
    buffer_store_dword v254, v255, s[{ws}:{ws+3}], 0 offen''')
def gen_k1(st=False):
    e=E()
    ACC=96; XA,WA,XB,WB=16,32,52,68
    acc=lambda pt,t: ACC+(pt*5+t)*4
    e('''s_cmp_ge_u32 s2, 256
    s_cbranch_scc1 K1_END
    s_load_dwordx4 s[40:43], s[0:1], 0
    s_load_dwordx2 s[44:45], s[0:1], 16
    s_load_dwordx8 s[48:55], s[0:1], 32
    s_load_dwordx2 s[56:57], s[0:1], 80
    v_lshrrev_b32 v88, 6, v0
    v_and_b32 v0, 63, v0
    v_readfirstlane_b32 s30, v88
    s_and_b32 s24, s2, 7
    s_lshr_b32 s25, s2, 3
    s_and_b32 s26, s24, 1
    s_lshl_b32 s26, s26, 2
    s_and_b32 s27, s25, 3
    s_add_u32 s26, s26, s27      ; rb
    s_lshr_b32 s27, s24, 1
    s_lshl_b32 s27, s27, 3
    s_lshr_b32 s25, s25, 2
    s_add_u32 s27, s27, s25      ; ct
    s_lshr_b32 s31, s30, 1       ; wm
    s_and_b32 s32, s30, 1        ; wn
    s_lshr_b32 s33, s30, 2       ; half
    s_and_b32 s34, s30, 3''')
    e('''s_lshl_b32 s35, s26, 8
    s_lshl_b32 s36, s30, 5
    s_add_u32 s35, s35, s36      ; rb*256+32w
    v_lshrrev_b32 v88, 3, v0
    v_lshlrev_b32 v88, 1, v88
    v_add_u32 v88, s35, v88
    v_mul_u32_u24 v88, 1280, v88
    v_lshrrev_b32 v89, 4, v0     ; g
    v_and_b32 v90, 7, v0
    v_xor_b32 v90, v90, v89
    v_lshl_add_u32 v1, v90, 4, v88
    v_xor_b32 v90, 4, v90
    v_lshl_add_u32 v2, v90, 4, v88
    v_add_u32 v2, 20480, v2
    v_add_u32 v3, 1280, v1
    v_add_u32 v4, 1280, v2''')
    e(f'''s_waitcnt lgkmcnt(0)
    s_cmp_eq_u32 s33, 0
    s_cselect_b32 s8, s48, s50
    s_cselect_b32 s9, s49, s51
    s_sub_u32 s36, s27, 12
    s_mul_i32 s36, s36, 160
    s_mul_i32 s37, s27, 320
    s_mul_i32 s38, s33, 160
    s_add_u32 s37, s37, s38
    s_cmp_lt_u32 s27, 12
    s_cselect_b32 s8, s42, s8
    s_cselect_b32 s9, s43, s9
    s_cselect_b32 s36, s37, s36
    s_movk_i32 s37, 3072
    s_cselect_b32 s37, 3840, s37  ; ldw
    s_mul_i32 s10, s37, 640
    s_mov_b32 s11, 0x20000
    s_lshl_b32 s39, s37, 6
    s_lshr_b32 s46, s34, 1
    s_lshl_b32 s46, s46, 5
    s_and_b32 s47, s34, 1
    s_lshl_b32 s47, s47, 2
    s_add_u32 s46, s46, s47       ; 32kk+4s''')
    srd(e,4,40,2048*1280); srd(e,12,56,0x10000000)
    for i in range(3):
        e(f'''v_add_u32 v88, {64*i}, v0
        v_mul_u32_u24 v90, 6554, v88
        v_lshrrev_b32 v90, 16, v90      ; rl
        v_mul_u32_u24 v91, 10, v90
        v_sub_u32 v91, v88, v91         ; c
        v_lshrrev_b32 v92, 2, v90
        v_and_b32 v90, 3, v90
        v_lshl_add_u32 v90, v92, 3, v90
        v_add_u32 v90, s46, v90         ; k
        v_mul_lo_u32 v90, v90, s37
        v_lshl_add_u32 v90, v91, 4, v90
        v_add_u32 v{5+i}, s36, v90''')
    e(f'''s_lshl_b32 s58, s30, 12
    s_mul_i32 s59, s33, {WHALF}
    s_mul_i32 s60, s34, 2560
    s_add_u32 s59, s59, s60
    s_add_u32 s59, s59, {WOFF}
    s_mov_b32 s61, 0     ; X soffset
    s_mov_b32 s62, 0     ; W soffset
    s_mov_b32 s63, 0''')
    def dma():
        L=[]
        L.append('s_add_u32 m0, s58, s63\ns_nop 0\nbuffer_load_dwordx4 v1, s[4:7], s61 offen lds')
        for i in (2,3,4): L.append(f's_add_u32 m0, m0, 1024\ns_nop 0\nbuffer_load_dwordx4 v{i}, s[4:7], s61 offen lds')
        L.append('s_add_u32 m0, s59, s63\ns_add_u32 s61, s61, 128\nbuffer_load_dwordx4 v5, s[8:11], s62 offen lds')
        L.append(f's_add_u32 m0, m0, 1024\ns_add_u32 s63, s63, {STG}\nbuffer_load_dwordx4 v6, s[8:11], s62 offen lds')
        L.append(f's_add_u32 m0, m0, 1024\ns_mov_b32 exec_hi, 0\nbuffer_load_dwordx4 v7, s[8:11], s62 offen lds\ns_mov_b32 exec_hi, -1\ns_add_u32 s62, s62, s39\ns_cmp_eq_u32 s63, {3*STG}\ns_cselect_b32 s63, 0, s63')
        return L
    stamp(e,0,st,0)
    for s in range(3):
        for x in dma(): e(x)
    e(f'''v_and_b32 v88, 15, v0       ; n
    v_lshrrev_b32 v90, 1, v88
    v_xor_b32 v90, v90, v89
    v_lshlrev_b32 v90, 4, v90
    v_lshl_add_u32 v90, v88, 7, v90
    s_lshl_b32 s35, s31, 13
    v_add_u32 v8, s35, v90
    v_xor_b32 v9, 64, v8
    v_lshrrev_b32 v90, 2, v0     ; 4g+r
    v_mul_u32_u24 v90, 160, v90
    s_mul_i32 s35, s32, 80
    s_add_u32 s35, s35, {WOFF}
    v_add_u32 v90, s35, v90
    v_and_b32 v91, 3, v0
    v_lshl_add_u32 v10, v91, 3, v90
    v_and_b32 v92, 1, v0
    v_lshl_add_u32 v90, v92, 3, v90
    v_lshrrev_b32 v91, 1, v91
    v_mul_u32_u24 v91, {WHALF}, v91
    v_add3_u32 v11, v90, v91, 64
    v_mov_b32 v12, v8
    v_mov_b32 v13, v9
    v_mov_b32 v14, v10
    v_mov_b32 v15, v11
    s_mov_b32 s64, 0
    s_mov_b32 s65, 0      ; iteration''')
    for i in range(80): e(f'v_mov_b32 v{ACC+i}, 0')
    def reads(kk,X,W):
        L=[]
        def w(t):
            for s in range(2):
                if t<4: L.append(f'ds_read_b64_tr_b16 {vr(W+t*4+2*s,2)}, v14 offset:{kk*5120+s*2560+(t&1)*32+(t>>1)*WHALF}')
                else: L.append(f'ds_read_b64_tr_b16 {vr(W+t*4+2*s,2)}, v15 offset:{kk*5120+s*2560}')
        for pt in range(4): L.append(f'ds_read_b128 {vr(X+pt*4,4)}, v{12+kk} offset:{pt*2048}')
        for t in range(5): w(t)
        return L
    def mfmas(X,W):
        return [f'v_mfma_f32_16x16x32_bf16 {vr(acc(pt,t),4)}, {vr(W+t*4,4)}, {vr(X+pt*4,4)}, {vr(acc(pt,t),4)}' for t in range(5) for pt in range(4)]
    nextslot=f'''s_add_u32 s64, s64, {STG}
    s_cmp_eq_u32 s64, {3*STG}
    s_cselect_b32 s64, 0, s64
    v_add_u32 v12, s64, v8
    v_add_u32 v13, s64, v9
    v_add_u32 v14, s64, v10
    v_add_u32 v15, s64, v11'''
    def P2():
        L=weave(mfmas(XA,WA),reads(1,XB,WB))
        L.insert(len(L)-3,nextslot)
        for x in L: e(x)
    def P1(extra):
        m=mfmas(XB,WB); r=reads(0,XA,WA)
        L=[]
        ex=list(extra)
        for i,x in enumerate(m):
            L.append(x)
            if r: L.append(r.pop(0))
            if i%3==1 and ex: L.append(ex.pop(0))
        L+=ex
        for x in L: e(x)
        e('s_waitcnt lgkmcnt(0)')
    e('s_waitcnt vmcnt(14)\ns_barrier')
    stamp(e,1,st,0)
    for x in reads(0,XA,WA): e(x)
    e('s_waitcnt lgkmcnt(0)\nK1_LOOP:')
    P2()
    e('s_waitcnt vmcnt(7) lgkmcnt(0)\ns_barrier')
    P1(dma())
    e('s_add_u32 s65, s65, 1\ns_cmp_lt_u32 s65, 7\ns_cbranch_scc1 K1_LOOP')
    P2()
    e('s_waitcnt vmcnt(7) lgkmcnt(0)\ns_barrier')
    SP=176; GX=184; GW=192
    side=[]
    side.append(f'''s_lshl_b32 s66, s2, 3
    s_add_u32 s66, s66, s30          ; u
    s_mul_i32 s67, s66, 3277
    s_lshr_b32 s67, s67, 16          ; ks=u/20
    s_mul_i32 s68, s67, 20
    s_sub_u32 s68, s66, s68          ; np
    s_cmp_lt_u32 s67, 48
    s_cselect_b32 s16, s52, s44
    s_cselect_b32 s17, s53, s45
    s_mov_b32 s18, {640*1280}
    s_cselect_b32 s18, {1536*1280}, s18
    s_mov_b32 s19, 0x20000
    s_cselect_b32 s69, 0, 48
    s_sub_u32 s69, s67, s69
    s_mul_i32 s69, s69, {32*1280}
    s_lshl_b32 s70, s68, 6
    s_add_u32 s69, s69, s70
    v_and_b32 v88, 15, v0
    v_mul_u32_u24 v90, {8*1280}, v89
    v_lshl_add_u32 v90, v88, 2, v90
    v_add_u32 v91, {4*1280}, v90''')
    for j in range(0,8,2):
        side.append('\n'.join(f'buffer_load_dword v{SP+jj}, v{90+(jj>>2)}, s[16:19], s69 offen offset:{(jj&3)*1280}' for jj in (j,j+1)))
    side.append(f'''s_mov_b32 s20, s54
    s_mov_b32 s21, s55
    s_mov_b32 s22, 1280
    s_mov_b32 s23, 0x20000
    s_mul_i32 s71, s66, 1280
    v_lshlrev_b32 v92, 5, v0
    buffer_load_dwordx4 {vr(GX,4)}, v92, s[4:7], s71 offen
    buffer_load_dwordx4 {vr(GX+4,4)}, v92, s[4:7], s71 offen offset:16''')
    side.append(f'''buffer_load_dwordx4 {vr(GW,4)}, v92, s[20:23], 0 offen
    buffer_load_dwordx4 {vr(GW+4,4)}, v92, s[20:23], 0 offen offset:16''')
    P1(side)
    P2()
    e('s_waitcnt vmcnt(12) lgkmcnt(0)\ns_barrier')
    P1([])
    P2()
    e('s_waitcnt lgkmcnt(0)')
    for x in mfmas(XB,WB): e(x)
    stamp(e,2,st,0)
    e(f'''s_waitcnt vmcnt(0)
    v_mov_b32 v93, 0''')
    for j in range(8): e(f'v_dot2c_f32_bf16 v93, v{GX+j}, v{GW+j}')
    e(f'''s_mov_b32 s72, 0x05040100
    s_mov_b32 s73, 0x07060302
    v_cmp_gt_u32 vcc, 40, v0''')
    for j in range(4):
        e(f'v_perm_b32 v{GX+j}, v{SP+2*j+1}, v{SP+2*j}, s72\nv_perm_b32 v{GX+4+j}, v{SP+2*j+1}, v{SP+2*j}, s73')
    e(f'''v_cndmask_b32 v93, 0, v93, vcc
    s_lshl_b32 s74, s68, 1           ; nt0
    s_add_u32 s75, s74, 1
    v_add_f32_dpp v93, v93, v93 quad_perm:[1,0,3,2] row_mask:0xf bank_mask:0xf''')
    for r in (74,75):
        e(f'''s_mul_i32 s76, s{r}, 13108
        s_lshr_b32 s76, s76, 16          ; nt/5
        s_mul_i32 s77, s76, 5
        s_sub_u32 s77, s{r}, s77
        s_mul_i32 s76, s76, 68
        s_add_u32 s76, s76, s67
        s_mul_i32 s76, s76, 5
        s_add_u32 s76, s76, s77
        s_lshl_b32 s{r}, s76, 10''')
        if r==74: e('v_add_f32_dpp v93, v93, v93 quad_perm:[2,3,0,1] row_mask:0xf bank_mask:0xf')
    e(f'''v_add_f32_dpp v93, v93, v93 row_half_mirror row_mask:0xf bank_mask:0xf
    v_cmp_gt_u32 vcc, 8, v88
    v_mov_b32 v90, s74
    v_mov_b32 v91, s75
    v_add_f32_dpp v93, v93, v93 row_mirror row_mask:0xf bank_mask:0xf
    v_cndmask_b32 v90, v91, v90, vcc
    v_and_b32 v91, 7, v0
    v_lshl_add_u32 v90, v91, 5, v90
    v_lshl_add_u32 v90, v89, 8, v90
    v_readlane_b32 s74, v93, 16
    v_readlane_b32 s75, v93, 32
    s_mov_b32 s76, {WS_WP}
    s_cmp_ge_u32 s66, 1360
    s_cbranch_scc1 K1_NOPACK
    buffer_store_dwordx4 {vr(GX,4)}, v90, s[12:15], s76 offen
    buffer_store_dwordx4 {vr(GX+4,4)}, v90, s[12:15], s76 offen offset:16
    K1_NOPACK:
    v_add_f32 v93, s74, v93
    v_add_f32 v93, s75, v93
    v_mul_f32 v93, 0xbfb8aa3b, v93
    v_exp_f32 v93, v93
    s_lshl_b32 s76, s66, 2
    s_add_u32 s76, s76, {WS_G}
    v_add_f32 v93, 1.0, v93
    v_rcp_f32 v93, v93
    v_mov_b32 v91, 0
    s_mov_b64 exec, 1
    buffer_store_dword v93, v91, s[12:15], s76 offen
    s_mov_b64 exec, -1
    s_cmp_ge_u32 s27, 12
    s_cbranch_scc1 K1_GU''')
    e(f'''s_mul_i32 s35, s26, 480
    s_mul_i32 s36, s27, 40
    s_add_u32 s35, s35, s36
    s_mul_i32 s36, s32, 10
    s_add_u32 s35, s35, s36
    s_lshl_b32 s35, s35, 11
    s_lshl_b32 s36, s31, 9
    s_add_u32 s35, s35, s36
    s_add_u32 s36, s35, 8192
    s_add_u32 s37, s35, 40960
    s_add_u32 s38, s35, 49152
    s_add_u32 s39, s35, 16384
    v_lshlrev_b32 v90, 4, v88
    v_lshl_add_u32 v1, v89, 11, v90
    v_and_b32 v91, 1, v89
    v_lshl_add_u32 v90, v91, 11, v90
    v_lshrrev_b32 v91, 1, v89
    v_mul_u32_u24 v91, 40960, v91
    v_add_u32 v2, v90, v91''')
    k=0
    for t in range(5):
        for pp in range(2):
            R=16+4*k; k+=1
            for h in range(2):
                a=acc(2*pp+h,t)
                e(f'v_cvt_pk_bf16_f32 v{R+2*h}, v{a}, v{a+1}\nv_cvt_pk_bf16_f32 v{R+2*h+1}, v{a+2}, v{a+3}')
            e(f'buffer_store_dwordx4 {vr(R,4)}, v{1 if t<4 else 2}, s[12:15], s{35+t} offen offset:{pp*256}')
    stamp(e,3,st,0)
    e('s_endpgm\nK1_GU:')
    e(f'''s_lshl_b32 s35, s26, 2
    s_add_u32 s35, s35, s31
    s_mul_i32 s35, s35, 280
    s_sub_u32 s36, s27, 12
    s_mul_i32 s36, s36, 10
    s_add_u32 s35, s35, s36
    s_mul_i32 s36, s32, 5
    s_add_u32 s35, s35, s36
    s_lshl_b32 s35, s35, 10
    s_add_u32 s35, s35, {WS_AP}
    s_add_u32 s36, s35, 4096
    v_lshlrev_b32 v90, 5, v88
    v_and_b32 v91, 1, v89
    v_lshrrev_b32 v92, 1, v89
    v_lshl_add_u32 v1, v91, 4, v90
    v_lshl_add_u32 v1, v92, 10, v1
    v_lshl_add_u32 v2, v91, 9, v90
    v_lshl_add_u32 v2, v92, 4, v2''')
    for pp in range(2):
        for c in range(4): e(f'v_permlane32_swap_b32 v{acc(2*pp,4)+c}, v{acc(2*pp+1,4)+c}')
    def silu8(pairs,R,T):
        for i,(g,u) in enumerate(pairs): e(f'v_mul_f32 v{T+i}, 0xbfb8aa3b, v{g}')
        for i,(g,u) in enumerate(pairs): e(f'v_exp_f32 v{T+i}, v{T+i}\nv_mul_f32 v{g}, v{g}, v{u}')
        for i in range(8): e(f'v_add_f32 v{T+i}, 1.0, v{T+i}')
        for i in range(8): e(f'v_rcp_f32 v{T+i}, v{T+i}')
        for i,(g,u) in enumerate(pairs): e(f'v_mul_f32 v{T+i}, v{g}, v{T+i}')
        for i in range(4): e(f'v_cvt_pk_bf16_f32 v{R+i}, v{T+2*i}, v{T+2*i+1}')
        e(f'v_permlane16_swap_b32 v{R}, v{R+2}\nv_permlane16_swap_b32 v{R+1}, v{R+3}')
    k=0
    for T in range(2):
        for pp in range(2):
            R=16+4*k; k+=1
            silu8([(acc(2*pp+h,T)+c,acc(2*pp+h,T+2)+c) for h in range(2) for c in range(4)],R,60)
            e(f'buffer_store_dwordx4 {vr(R,4)}, v1, s[12:15], s35 offen offset:{T*2048+pp*512}')
    silu8([(acc(2*pp,4)+c,acc(2*pp+1,4)+c) for pp in range(2) for c in range(4)],32,60)
    e(f'buffer_store_dwordx4 {vr(32,4)}, v2, s[12:15], s36 offen')
    stamp(e,3,st,0)
    e('K1_END:\ns_endpgm')
    return ('k1_kernel',e.text(),256,512,3*STG,256 if st else 200)
```

```python
from asmlib import *
from k1 import *
PS=4128
def gen_k2(st=False):
    e=E()
    S=lambda t:16+16*t
    KV=160
    O=232
    Q=2
    MK=8
    e(f'''s_cmp_ge_u32 s2, 256
    s_cbranch_scc1 K2_END
    s_load_dwordx2 s[12:13], s[0:1], 80
    v_lshrrev_b32 v16, 6, v0
    v_lshlrev_b32 v17, 3, v0
    v_and_b32 v0, 63, v0
    v_readfirstlane_b32 s30, v16
    s_and_b32 s26, s2, 31        ; head
    s_lshr_b32 s27, s2, 5        ; qb
    s_mov_b32 s14, 0x10000000
    s_mov_b32 s15, 0x20000
    s_and_b32 s34, s30, 3        ; quarter
    s_lshr_b32 s33, s30, 2       ; 0 K, 1 V
    s_lshr_b32 s35, s34, 1
    s_add_u32 s35, s35, s27
    s_add_u32 s35, s35, 7
    s_and_b32 s35, s35, 7
    s_mul_i32 s35, s35, 480
    s_mul_i32 s36, s26, 5
    s_add_u32 s37, s33, 1
    s_mul_i32 s37, s37, 160
    s_add_u32 s35, s35, s36
    s_add_u32 s35, s35, s37
    s_lshl_b32 s35, s35, 11
    s_and_b32 s37, s34, 1
    s_lshl_b32 s37, s37, 10
    s_add_u32 s35, s35, s37
    s_mul_i32 s37, s33, {5*PS}
    s_lshl_b32 s38, s34, 10
    s_add_u32 s37, s37, s38      ; lds
    v_lshlrev_b32 v1, 4, v0
    s_mul_i32 s38, s27, 480
    s_add_u32 s38, s38, s36
    s_lshl_b32 s38, s38, 11
    s_lshl_b32 s39, s30, 8
    s_add_u32 s38, s38, s39      ; Q base
    s_add_u32 s39, s38, 8192
    v_and_b32 v248, 31, v0       ; qq
    v_lshrrev_b32 v249, 5, v0    ; h
    v_lshlrev_b32 v18, 3, v248
    v_lshl_add_u32 v19, v249, 12, v18
    s_mov_b32 m0, s37
    s_waitcnt lgkmcnt(0)''')
    stamp(e,0,st,1)
    for i in range(5):
        e(f'buffer_load_dwordx4 v1, s[12:15], s35 offen lds')
        if i<4: e(f's_add_u32 m0, m0, {PS}\ns_add_u32 s35, s35, 2048')
    e(f'''buffer_load_dwordx2 {vr(Q,2)}, v19, s[12:15], s38 offen
    buffer_load_dwordx2 {vr(Q+2,2)}, v19, s[12:15], s38 offen offset:2048
    buffer_load_dwordx2 {vr(Q+4,2)}, v18, s[12:15], s39 offen
    s_lshl_b32 s40, s27, 10
    s_lshl_b32 s41, s30, 7
    s_add_u32 s40, s40, s41
    s_add_u32 s40, s40, {WS_G}
    v_lshlrev_b32 v20, 2, v248
    buffer_load_dword v250, v20, s[12:15], s40 offen
    v_mov_b32 v22, 0x3f803f80
    v_mov_b32 v23, 0x3f803f80
    ds_write_b64 v17, v[22:23] offset:{10*PS}''')
    e(f'''v_and_b32 v20, 19, v248
    v_and_b32 v21, 4, v248
    v_lshl_add_u32 v20, v21, 1, v20
    v_and_b32 v21, 8, v248
    v_lshrrev_b32 v21, 1, v21
    v_add_u32 v20, v21, v20       ; pi(m)
    s_lshl_b32 s41, s30, 8
    v_lshl_add_u32 v20, v20, 3, s41
    v_add_u32 v252, {4*PS}, v20
    v_mul_u32_u24 v21, {2*PS}, v249
    v_add_u32 v251, v21, v20
    v_bfe_u32 v20, v0, 4, 1
    v_and_b32 v21, 3, v0
    v_lshl_add_u32 v20, v20, 2, v21
    v_min_u32 v20, 5, v20
    v_add_u32 v20, 5, v20
    v_mul_u32_u24 v20, {PS}, v20
    v_bfe_u32 v21, v0, 2, 2
    v_lshl_add_u32 v21, v249, 3, v21
    v_lshl_add_u32 v21, v21, 3, s41
    v_add_u32 v253, v20, v21
    v_lshlrev_b32 v20, 3, v249
    v_sub_u32 v20, v248, v20      ; qq-8h
    v_mov_b32 v21, 0xffff
    v_mov_b32 v24, 0xffff0000''')
    for r in range(16):
        kk=16*(r>>3)+(r&7)
        e(f'v_cmp_le_i32 s[{44+2*r}:{45+2*r}], {kk}, v20')
    for j in range(8):
        e(f'v_cndmask_b32 v{MK+j}, 0, v21, s[{44+4*j}:{45+4*j}]\nv_cndmask_b32 v25, 0, v24, s[{46+4*j}:{47+4*j}]\nv_or_b32 v{MK+j}, v{MK+j}, v25')
    e(f'''v_cmp_eq_u32 vcc, 0, v249
    s_waitcnt vmcnt(1) lgkmcnt(0)
    v_cndmask_b32 v{Q+4}, 0, v{Q+4}, vcc
    v_cndmask_b32 v{Q+5}, 0, v{Q+5}, vcc
    s_barrier''')
    stamp(e,1,st,1)
    order=[8,0,1,2,3,4,5,6,7]
    def kread(i):
        t=order[i]; b=KV+6*i
        return f'''ds_read_b64 {vr(b,2)}, v251 offset:{t*256}
        ds_read_b64 {vr(b+2,2)}, v251 offset:{t*256+PS}
        ds_read_b64 {vr(b+4,2)}, v252 offset:{t*256}'''
    for i in range(4): e(kread(i))
    for i in range(9):
        t=order[i]; b=KV+6*i
        if i+4<9: e(kread(i+4))
        e(f's_waitcnt lgkmcnt({min(12,3*(8-i))})')
        e(f'v_mfma_f32_32x32x16_bf16 {vr(S(t),16)}, {vr(b,4)}, {vr(Q,4)}, 0')
        e(f'v_mfma_f32_32x32x8_bf16 {vr(S(t),16)}, {vr(b+4,2)}, {vr(Q+4,2)}, {vr(S(t),16)}')
    e('s_cmp_lg_u32 s27, 0\ns_cbranch_scc1 K2_NOFIX\ns_nop 11')
    for t in range(8):
        for r in range(16): e(f'v_mov_b32 v{S(t)+r}, 0xff800000')
        if t<7: e(f's_cmp_ge_u32 s30, {7-t}\ns_cbranch_scc1 K2_NOFIX')
    e('K2_NOFIX:')
    vreads=[f'ds_read_b64_tr_b16 {vr(KV+8*t+4*u+2*s,2)}, v253 offset:{t*256+u*128+s*32}' for t in range(9) for u in range(2) for s in range(2)]
    L=[f'v_cndmask_b32 v{S(8)+r}, v{S(0)+r}, v{S(8)+r}, s[{44+2*r}:{45+2*r}]' for r in range(16)]
    M=S(0)
    first=True
    for t in [8,1,2,3,4,5,6,7]:
        for r in range(0,16,8):
            for c in range(4):
                a,b=S(t)+r+2*c,S(t)+r+2*c+1
                if first and r==0: L.append(f'v_max_f32 v{M+c}, v{a}, v{b}')
                else: L.append(f'v_max3_f32 v{M+c}, v{a}, v{b}, v{M+c}')
        first=False
    for x in weave(L,vreads,start=4,step=2): e(x)
    e(f'''v_max3_f32 v{M}, v{M}, v{M+1}, v{M+2}
    v_max_f32 v{M}, v{M}, v{M+3}
    v_mov_b32 v{M+1}, v{M}
    s_mov_b32 s42, 0x3ea52b5c
    v_permlane32_swap_b32 v{M}, v{M+1}
    v_max_f32 v{M}, v{M}, v{M+1}
    v_mul_f32 v1, s42, v{M}
    s_waitcnt lgkmcnt(0)''')
    pend=[]
    firstm=True
    def pv(t,u,P):
        nonlocal firstm
        c='0' if firstm else vr(O,16); firstm=False
        return f'v_mfma_f32_32x32x16_bf16 {vr(O,16)}, {vr(KV+8*t+4*u,4)}, {vr(P+4*u,4)}, {c}'
    for t in [8,1,2,3,4,5,6,7]:
        b=S(t); L=[]
        for r in range(16): L.append(f'v_fma_f32 v{b+r}, v{b+r}, s42, -v1')
        for r in range(16): L.append(f'v_exp_f32 v{b+r}, v{b+r}')
        for j in range(8): L.append(f'v_cvt_pk_bf16_f32 v{b+j}, v{b+2*j}, v{b+2*j+1}')
        if t==8:
            for j in range(8): L.append(f'v_bfi_b32 v{S(0)+j}, v{MK+j}, 0, v{b+j}\nv_and_b32 v{b+j}, v{MK+j}, v{b+j}')
        for x in weave(L,pend,start=2,step=8): e(x)
        pend=[pv(t,0,b),pv(t,1,b)]
        if t==8: pend+=[pv(0,0,S(0)),pv(0,1,S(0))]
    for x in pend: e(x)
    stamp(e,2,st,1)
    e(f'''s_lshl_b32 s40, s27, 2
    s_lshr_b32 s41, s30, 1
    s_add_u32 s40, s40, s41
    s_mul_i32 s40, s40, {PBS}
    s_add_u32 s40, s40, {WS_AP+OCT_O*1024}
    s_and_b32 s41, s30, 1
    s_lshl_b32 s41, s41, 9
    s_add_u32 s40, s40, s41
    v_add_u32 v20, s36, v249
    v_lshrrev_b32 v21, 1, v20
    v_and_b32 v20, 1, v20
    v_lshlrev_b32 v20, 3, v20
    v_lshl_add_u32 v20, v21, 10, v20
    v_lshl_add_u32 v20, v248, 4, v20
    s_waitcnt vmcnt(0)
    v_rcp_f32 v1, v{O+12}
    v_mul_f32 v1, v1, v250''')
    for r in range(12): e(f'v_mul_f32 v{O+r}, v{O+r}, v1')
    for j in range(6): e(f'v_cvt_pk_bf16_f32 v{O+j}, v{O+2*j}, v{O+2*j+1}')
    e(f'''buffer_store_dwordx2 {vr(O,2)}, v20, s[12:15], s40 offen
    buffer_store_dwordx2 {vr(O+2,2)}, v20, s[12:15], s40 offen offset:1024
    s_mov_b32 exec_hi, 0
    buffer_store_dwordx2 {vr(O+4,2)}, v20, s[12:15], s40 offen offset:2048''')
    stamp(e,3,st,1)
    e('K2_END:\ns_endpgm')
    return ('k2_kernel',e.text(),256,512,11*PS,256)

def gen_k3(st=False):
    e=E()
    ACC=16; R=96; ND=4
    acc=lambda p,t: ACC+(p*5+t)*4
    X=lambda s,p: R+36*s+4*p
    W=lambda s,t: R+36*s+16+4*t
    e(f'''s_cmp_ge_u32 s2, 256
    s_cbranch_scc1 K3_END
    s_load_dwordx2 s[12:13], s[0:1], 80
    s_load_dwordx2 s[8:9], s[0:1], 64
    v_lshrrev_b32 v11, 6, v0
    v_and_b32 v0, 63, v0
    v_readfirstlane_b32 s30, v11
    s_mov_b32 s14, 0x10000000
    s_mov_b32 s15, 0x20000
    s_mov_b32 s10, {2048*1280}
    s_mov_b32 s11, 0x20000
    s_and_b32 s24, s2, 7
    s_lshr_b32 s25, s2, 3
    s_lshr_b32 s26, s24, 1
    s_lshl_b32 s26, s26, 3
    s_and_b32 s27, s25, 7
    s_add_u32 s26, s26, s27      ; pb
    s_and_b32 s27, s24, 1
    s_lshl_b32 s27, s27, 2
    s_lshr_b32 s25, s25, 3
    s_add_u32 s27, s27, s25      ; nc
    s_mul_i32 s35, s26, {PBS}
    s_lshl_b32 s36, s30, 12
    s_add_u32 s35, s35, s36
    s_add_u32 s35, s35, {WS_AP}  ; A offset
    s_mul_i32 s36, s27, 68
    s_add_u32 s36, s36, s30
    s_mul_i32 s36, s36, 5120
    s_add_u32 s36, s36, {WS_WP}  ; W offset
    v_and_b32 v11, 15, v0        ; n
    v_lshrrev_b32 v12, 4, v0     ; g
    v_lshlrev_b32 v13, 4, v11
    v_lshl_add_u32 v13, v12, 10, v13
    v_lshlrev_b32 v5, 4, v0
    v_add_u32 v6, 4096, v5
    s_lshl_b32 s37, s26, 8
    s_add_u32 s37, s37, {WS_G}''')
    for p in range(4):
        e(f'''s_add_u32 s{40+p}, s30, {p}
        s_and_b32 s{40+p}, s{40+p}, 3
        s_lshl_b32 s38, s{40+p}, 8
        v_add_u32 v{1+p}, s38, v13
        s_lshr_b32 s38, s38, 2
        v_lshl_add_u32 v{7+p}, v11, 2, s38''')
    e('s_waitcnt lgkmcnt(0)')
    stamp(e,0,st,2)
    def loads(j):
        s=j%ND; L=[]
        for p in range(4): L.append(f'buffer_load_dwordx4 {vr(X(s,p),4)}, v{1+p}, s[12:15], s35 offen')
        for t in range(5): L.append(f'buffer_load_dwordx4 {vr(W(s,t),4)}, v{5+(t>>2)}, s[12:15], s36 offen offset:{(t&3)*1024}')
        L[-1]+=f'\ns_add_u32 s35, s35, {16384 if j!=11 else 16384+8192}\ns_add_u32 s36, s36, 20480'
        return L
    for p in range(4): e(f'buffer_load_dword v{7+p}, v{7+p}, s[12:15], s37 offen')
    for j in range(ND-1):
        for x in loads(j): e(x)
    for j in range(17):
        s=j%ND
        nxt=loads(j+ND-1) if j+ND-1<17 else []
        e(f's_waitcnt vmcnt({9*min(ND-2,16-j)})')
        if j==0: stamp(e,1,st,2)
        if j==12:
            for p in range(4): e(f'v_sub_f32 v{7+p}, 1.0, v{7+p}')
            for t in range(5):
                for p in range(4):
                    for c in range(4): e(f'v_mul_f32 v{acc(p,t)+c}, v{acc(p,t)+c}, v{7+p}')
        m=[f'v_mfma_f32_16x16x32_bf16 {vr(acc(p,t),4)}, {vr(W(s,t),4)}, {vr(X(s,p),4)}, {vr(acc(p,t),4) if j else 0}' for t in range(5) for p in range(4)]
        for x in weave(m,nxt,start=0,step=2): e(x)
    stamp(e,2,st,2)
    for p in range(1,4):
        e(f's_mul_i32 s38, s{40+p}, 15360\nv_add_u32 v{p}, s38, v5')
    e(f's_mul_i32 s38, s30, 15360\nv_add_u32 v4, s38, v5')
    for t in range(5):
        for p in range(1,4): e(f'ds_write_b128 v{p}, {vr(acc(p,t),4)} offset:{(p-1)*5120+t*1024}')
    e(f'''s_lshl_b32 s38, s26, 6
    s_lshl_b32 s39, s30, 4
    s_add_u32 s38, s38, s39
    s_mul_i32 s38, s38, 1280
    s_mul_i32 s39, s27, 160
    s_add_u32 s38, s38, s39
    v_mul_u32_u24 v13, 1280, v11
    v_lshl_add_u32 v13, v12, 3, v13
    s_waitcnt lgkmcnt(0)
    s_barrier''')
    for t in range(5):
        for q in range(3): e(f'ds_read_b128 {vr(R+(t*3+q)*4,4)}, v4 offset:{q*5120+t*1024}')
    for t in range(5):
        e(f's_waitcnt lgkmcnt({12-3*t})')
        b=R+t*12; a=acc(0,t)
        for c in range(4): e(f'v_add_f32 v{a+c}, v{a+c}, v{b+c}\nv_add_f32 v{b+4+c}, v{b+4+c}, v{b+8+c}')
        for c in range(4): e(f'v_add_f32 v{a+c}, v{a+c}, v{b+4+c}')
        e(f'v_cvt_pk_bf16_f32 v{a}, v{a}, v{a+1}\nv_cvt_pk_bf16_f32 v{a+1}, v{a+2}, v{a+3}')
        e(f'buffer_store_dwordx2 {vr(a,2)}, v13, s[8:11], s38 offen offset:{t*32}')
    stamp(e,3,st,2)
    e('K3_END:\ns_endpgm')
    return ('k3_kernel',e.text(),256,256,61440,256 if st else 240)
```

```python
import re
TRANS=('v_exp_f32','v_log_f32','v_rcp_f32','v_rsq_f32','v_sqrt_f32')
def regs(tok,kind):
    tok=tok.strip().lstrip('-')
    tok=tok.replace('abs(','').replace(')','').replace('|','')
    m=re.fullmatch(kind+r'(\d+)',tok)
    if m: return {int(m.group(1))}
    m=re.fullmatch(kind+r'\[(\d+):(\d+)\]',tok)
    if m: return set(range(int(m.group(1)),int(m.group(2))+1))
    if kind=='s' and tok in('vcc','vcc_lo','vcc_hi'): return {106,107}
    return set()
def parse(line):
    l=line.split(';')[0].strip()
    if not l or l.endswith(':') or l.startswith('.'): return None
    p=l.split(None,1); op=p[0]
    ops=[]
    if len(p)>1:
        for o in p[1].split(','):
            ops.append(o.strip().split(' ')[0])
    d=dict(op=op,vr=set(),vw=set(),sr=set(),sw=set(),cls='other',C=set(),AB=set(),m0w=False,n=1,dpp=('quad_perm' in l or 'row_' in l))
    V=lambda o:regs(o,'v'); S=lambda o:regs(o,'s')
    if op=='s_nop': d['n']=int(ops[0])+1
    elif op.startswith('v_mfma'):
        d['cls']='mfma'; d['vw']=V(ops[0]); d['AB']=V(ops[1])|V(ops[2]); d['C']=V(ops[3]); d['vr']=d['AB']|d['C']
        d['passes']=8 if '32x32' in op else 4
    elif op.startswith('v_'):
        d['cls']='valu'
        if op.startswith('v_cmp'):
            d['sw']=S(ops[0]); src=ops[1:]
        elif op.startswith(('v_readfirstlane','v_readlane')):
            d['sw']=S(ops[0]); src=ops[1:]
        elif op.startswith(('v_permlane','v_swap')):
            d['vw']=V(ops[0])|V(ops[1]); src=ops
        else:
            d['vw']=V(ops[0]); src=ops[1:]
            if op.startswith(('v_fmac','v_dot2c')): src=ops
        for o in src: d['vr']|=V(o); d['sr']|=S(o)
    elif op.startswith('buffer_') or op.startswith('global_'):
        d['cls']='vmem'
        d['lds']=' lds' in l
        if op.startswith('buffer_load') and not d['lds']:
            d['vw']=V(ops[0]); src=ops[1:]
        else: src=ops
        for o in src: d['vr']|=V(o); d['sr']|=S(o)
        if op.startswith('buffer_store') and ('x4' in op or 'x3' in op): d['wide']=V(ops[0])
    elif op.startswith('ds_'):
        d['cls']='ds'
        if op.startswith('ds_read'): d['vw']=V(ops[0]); src=ops[1:]
        else: src=ops
        for o in src: d['vr']|=V(o)
    elif op.startswith('s_'):
        d['cls']='salu'
        if ops and ops[0]=='m0': d['m0w']=True
        for o in ops[1:]: d['sr']|=S(o)
        if op.startswith('s_cmp'): d['sr']|=S(ops[0])
    return d
def need(p,c):
    n=0
    if p['cls']=='valu':
        if c['cls']=='mfma' and p['vw']&c['vr']: n=max(n,2)
        if c['cls']=='valu':
            if p['op'].startswith(TRANS) and p['vw']&c['vr']: n=max(n,1)
            if (c['op'].startswith('v_permlane') or c['dpp']) and p['vw']&c['vr']: n=max(n,2)
            if c['op'].startswith(('v_readfirstlane','v_readlane')) and p['vw']&c['vr']: n=max(n,1)
            if p['sw']&c['sr']: n=max(n,2)
            if p['op'].startswith('v_dot2') and p['op']!=c['op'] and p['vw']&(c['vr']|c['vw']): n=max(n,3)
        if c['cls']=='vmem' and p['sw']&c['sr']: n=max(n,5)
        if c['cls']=='salu' and p['sw']&c['sr']: n=max(n,2)
    if p['cls']=='mfma':
        big=p['passes']==8
        if c['cls']=='mfma':
            if p['vw']&c['AB']: n=max(n,12 if big else 8)
            if p['vw']&c['C'] and (p['vw']!=c['C'] or p['passes']!=c['passes']): n=max(n,10 if big else 6)
            if p['vw']&c['vw'] and not (p['vw']&c['C']): n=max(n,12 if big else 8)
        elif c['cls'] in('valu','vmem','ds'):
            if p['vw']&(c['vr']|c['vw']): n=max(n,12 if big else 8)
            if c['cls']=='valu' and p['C']&c['vw']: n=max(n,7 if big else 3)
    if p.get('wide') and p['wide']&c['vw']: n=max(n,2)
    if p['m0w'] and c['cls']=='vmem' and c.get('lds'): n=max(n,1)
    return n
def pad(lines):
    out=[]; hist=[]
    for line in lines:
        c=parse(line)
        if c is None: out.append(line); continue
        dist=0; req=0
        for p in reversed(hist):
            if dist>=20: break
            req=max(req,need(p,c)-dist); dist+=p['n']
        if req>0:
            out.append(f'    s_nop {req-1}'); hist.append(parse(f's_nop {req-1}'))
        out.append(line); hist.append(c)
    return out
class E:
    def __init__(s): s.l=[]
    def __call__(s,t):
        for x in t.strip('\n').split('\n'):
            x=x.strip()
            if x: s.l.append(x if x.endswith(':') else '    '+x)
    def text(s): return '\n'.join(pad(s.l))+'\n'
def vr(a,n): return f'v{a}' if n==1 else f'v[{a}:{a+n-1}]'
def weave(main,fill,start=0,step=1):
    out=[]; f=list(fill);
    for i,m in enumerate(main):
        out.append(m)
        if i>=start and (i-start)%step==0 and f: out.append(f.pop(0))
    out+=f
    return out
def desc(name,vgpr,sgpr=102):
    acc=(vgpr+3)//4*4
    return f""".p2align 6
.amdhsa_kernel {name}
  .amdhsa_next_free_vgpr {vgpr}
  .amdhsa_next_free_sgpr {sgpr}
  .amdhsa_accum_offset {acc}
  .amdhsa_group_segment_fixed_size 0
  .amdhsa_kernarg_size 88
  .amdhsa_user_sgpr_count 2
  .amdhsa_user_sgpr_kernarg_segment_ptr 1
  .amdhsa_system_sgpr_workgroup_id_x 1
.end_amdhsa_kernel
"""
def module(kernels):
    hdr=open('gated_mix__sliding_block__swiglu_ffn__prompt.s.ref').read().split('; Override')[0]
    s=hdr+''.join(f'; @launch kernel={k[0]} grid=({k[2]},1,1) block=({k[3]},1,1) lds={k[4]}\n' for k in kernels)
    s+='.amdgcn_target "amdgcn-amd-amdhsa--gfx950"\n.text\n'
    seen=[]
    for k in kernels:
        if k[0] in seen: continue
        seen.append(k[0])
        s+=f'.globl {k[0]}\n.p2align 8\n.type {k[0]},@function\n{k[0]}:\n{k[1]}'
    s+='.section .rodata,"a"\n'
    seen=[]
    for k in kernels:
        if k[0] in seen: continue
        seen.append(k[0]); s+=desc(k[0],k[5])
    return s
class Q(E):
    def __init__(s): super().__init__(); s.vq=[]; s.lq=[]
    def vm(s,tag,t): s(t); s.vq.append(tag)
    def ds(s,tag,t): s(t); s.lq.append(tag)
    def _n(s,q,tags):
        idx=[i for i,x in enumerate(q) if x in tags]
        if not idx: return None
        n=len(q)-1-idx[-1]; del q[:idx[-1]+1]; return n
    def wait(s,vm=(),ds=()):
        a=s._n(s.vq,vm); b=s._n(s.lq,ds); p=[]
        if a is not None: p.append(f'vmcnt({min(a,63)})')
        if b is not None: p.append(f'lgkmcnt({min(b,15)})')
        if p: s('s_waitcnt '+' '.join(p))
    def run(s,items):
        for it in items:
            if callable(it): it()
            else: s(it)
```

```python
from asmlib import *
from mega import *
def tail(e,stamp,check,var):
    S=lambda t:112+16*t
    KV=16; O=96; Q=96; MK=88
    e(f'''v_and_b32 v11, 19, v2
    v_and_b32 v12, 4, v2
    v_lshl_add_u32 v11, v12, 1, v11
    v_and_b32 v12, 8, v2
    v_lshrrev_b32 v12, 1, v12
    v_add_u32 v11, v12, v11       ; pi(m)
    s_lshl_b32 s41, s30, 8
    v_lshl_add_u32 v11, v11, 3, s41
    v_add_u32 v6, {4*PS}, v11
    v_mul_u32_u24 v12, {2*PS}, v3
    v_add_u32 v5, v12, v11
    v_and_b32 v11, 1, v14
    v_and_b32 v12, 3, v0
    v_lshl_add_u32 v11, v11, 2, v12
    v_min_u32 v11, 5, v11
    v_add_u32 v11, 5, v11
    v_mul_u32_u24 v11, {PS}, v11
    v_bfe_u32 v12, v0, 2, 2
    v_lshl_add_u32 v12, v3, 3, v12
    v_lshl_add_u32 v12, v12, 3, s41
    v_add_u32 v7, v11, v12
    v_lshlrev_b32 v11, 3, v3
    v_sub_u32 v11, v2, v11      ; qq-8h
    v_mov_b32 v12, 0xffff
    v_mov_b32 v9, 0xffff0000
    v_lshlrev_b32 v8, 4, v0
    s_mov_b32 s8, s56
    s_mov_b32 s9, s57
    s_mov_b32 s10, {2048*1280}
    s_mov_b32 s84, s65
    s_mov_b32 s85, s66
    s_lshr_b32 s26, s24, 1
    s_lshl_b32 s26, s26, 3
    s_and_b32 s27, s25, 7
    s_add_u32 s26, s26, s27      ; pb
    s_and_b32 s27, s24, 1
    s_lshl_b32 s27, s27, 2
    s_add_u32 s27, s27, s28      ; nc
    s_mul_i32 s36, s27, 68
    s_add_u32 s36, s36, s34
    s_mul_i32 s36, s36, 5120
    s_add_u32 s36, s36, {WS_WP}  ; W offset
    s_mul_i32 s37, s34, 25600
    s_add_u32 s37, s37, {WPL}''')
    for r in range(16):
        e(f'v_cmp_le_i32 s[{44+2*r}:{45+2*r}], {16*(r>>3)+(r&7)}, v11')
    for j in range(8):
        e(f'v_cndmask_b32 v{MK+j}, 0, v12, s[{44+4*j}:{45+4*j}]\nv_cndmask_b32 v10, 0, v9, s[{46+4*j}:{47+4*j}]\nv_or_b32 v{MK+j}, v{MK+j}, v10')
    e('v_cmp_eq_u32 vcc, 0, v3')
    e.wait(vm=['kv'],ds=['ones']); e.lq.clear()
    e(f'''v_cndmask_b32 v{Q+4}, 0, v{Q+4}, vcc
    v_cndmask_b32 v{Q+5}, 0, v{Q+5}, vcc
    s_waitcnt lgkmcnt(0)
    s_barrier''')
    stamp(4)
    def wpiece(i):
        a,b=i,i+12
        ga=(a//5)*20480+(a%5)*1024; gb=(b//5)*20480+(b%5)*1024
        def f():
            e(f's_mul_i32 s38, s33, {gb-ga}\ns_add_u32 s38, s38, {ga}\ns_add_u32 s38, s38, s36')
            e(f's_add_u32 m0, s39, {i*1024}')
            e.vm('wp',f'buffer_load_dwordx4 v8, s[12:15], s38 offen {SC} lds')
        return f
    e('s_mul_i32 s39, s33, 12288\ns_add_u32 s39, s39, s37')
    wp=[wpiece(i) for i in range(13)]
    order=[8,0,1,2,3,4,5,6,7]
    def kread(i):
        t=order[i]; b=KV+6*i
        e.ds(('k',i),f'ds_read_b64 {vr(b,2)}, v5 offset:{t*256}')
        e.ds(('k',i),f'ds_read_b64 {vr(b+2,2)}, v5 offset:{t*256+PS}')
        e.ds(('k',i),f'ds_read_b64 {vr(b+4,2)}, v6 offset:{t*256}')
    for i in range(4): kread(i)
    for i in range(9):
        t=order[i]; b=KV+6*i
        if i+4<9: kread(i+4)
        e.wait(ds=[('k',i)])
        e(f'v_mfma_f32_32x32x16_bf16 {vr(S(t),16)}, {vr(b,4)}, {vr(Q,4)}, 0')
        e(f'v_mfma_f32_32x32x8_bf16 {vr(S(t),16)}, {vr(b+4,2)}, {vr(Q+4,2)}, {vr(S(t),16)}')
        if i<5: wp.pop(0)()
    e('s_cmp_lg_u32 s81, 0\ns_cbranch_scc1 NOFIX\ns_nop 11')
    for t in range(8):
        for r in range(16): e(f'v_mov_b32 v{S(t)+r}, 0xff800000')
        if t<7: e(f's_cmp_ge_u32 s30, {7-t}\ns_cbranch_scc1 NOFIX')
    e('NOFIX:')
    vreads=[f'ds_read_b64_tr_b16 {vr(KV+8*t+4*u+2*s,2)}, v7 offset:{t*256+u*128+s*32}' for t in range(9) for u in range(2) for s in range(2)]
    L=[f'v_cndmask_b32 v{S(8)+r}, v{S(0)+r}, v{S(8)+r}, s[{44+2*r}:{45+2*r}]' for r in range(16)]
    M=S(0); first=True
    for t in [8,1,2,3,4,5,6,7]:
        for r in range(0,16,8):
            for c in range(4):
                a,b=S(t)+r+2*c,S(t)+r+2*c+1
                L.append(f'v_max_f32 v{M+c}, v{a}, v{b}' if first and r==0 else f'v_max3_f32 v{M+c}, v{a}, v{b}, v{M+c}')
        first=False
    for x in weave(L,vreads,start=4,step=2): e(x)
    e(f'''v_max3_f32 v{M}, v{M}, v{M+1}, v{M+2}
    v_max_f32 v{M}, v{M}, v{M+3}
    v_mov_b32 v{M+1}, v{M}
    s_mov_b32 s42, 0x3ea52b5c
    s_mov_b32 s43, 0x3ea52b5c
    v_permlane32_swap_b32 v{M}, v{M+1}
    v_max_f32 v{M}, v{M}, v{M+1}
    v_mul_f32 v10, 0xbea52b5c, v{M}
    s_waitcnt lgkmcnt(0)''')
    e.wait(vm=['pub2'])
    e(f'''s_barrier
    s_cmp_lg_u32 s30, 4
    s_cbranch_scc1 NOF2
    v_mov_b32 v12, 1
    s_mov_b64 exec, 1
    buffer_store_dword v12, off, s[12:15], s84 {SC}
    s_mov_b64 exec, -1
    NOF2:''')
    stamp(5)
    pend=[]; firstm=[True]
    def pv(t,u,P):
        c='0' if firstm[0] else vr(O,16); firstm[0]=False
        return f'v_mfma_f32_32x32x16_bf16 {vr(O,16)}, {vr(KV+8*t+4*u,4)}, {vr(P+4*u,4)}, {c}'
    f2load=f'buffer_load_dword v9, v12, s[12:15], s83 offen {SC}'
    for t in [8,1,2,3,4,5,6,7]:
        b=S(t); L=[]
        for r in range(0,16,2): L.append(f'v_pk_fma_f32 {vr(b+r,2)}, {vr(b+r,2)}, s[42:43], v[10:11] op_sel_hi:[1,1,0]')
        for r in range(16): L.append(f'v_exp_f32 v{b+r}, v{b+r}')
        for j in range(8): L.append(f'v_cvt_pk_bf16_f32 v{b+j}, v{b+2*j}, v{b+2*j+1}')
        if t==8:
            for j in range(8): L.append(f'v_bfi_b32 v{S(0)+j}, v{MK+j}, 0, v{b+j}\nv_and_b32 v{b+j}, v{MK+j}, v{b+j}')
        L=weave(L,pend,start=9,step=4)
        if wp: L.insert(4,wp.pop(0))
        if wp: L.insert(20,wp.pop(0))
        if t==7: L.insert(0,lambda:(e(f's_lshr_b32 s83, s26, 1\ns_lshl_b32 s83, s83, 6\ns_add_u32 s83, s83, {WS_F+1024}\nv_lshlrev_b32 v12, 2, v13'),e.vm('f2',f2load)))
        e.run(L)
        pend=[pv(t,0,b),pv(t,1,b)]
        if t==8: pend+=[pv(0,0,S(0)),pv(0,1,S(0))]
    for x in pend: e(x)
    e(f'''s_lshl_b32 s40, s81, 2
    s_add_u32 s40, s40, s31
    s_mul_i32 s40, s40, {PBS}
    s_add_u32 s40, s40, {WS_AP+OCT_O*1024}
    s_lshl_b32 s41, s32, 9
    s_add_u32 s40, s40, s41
    v_add_u32 v5, s82, v3
    v_lshrrev_b32 v6, 1, v5
    v_and_b32 v5, 1, v5
    v_lshlrev_b32 v5, 3, v5
    v_lshl_add_u32 v5, v6, 10, v5
    v_lshl_add_u32 v5, v2, 4, v5
    v_rcp_f32 v1, v{O+12}
    v_mul_f32 v1, v1, v4''')
    for r in range(12): e(f'v_mul_f32 v{O+r}, v{O+r}, v1')
    for j in range(6): e(f'v_cvt_pk_bf16_f32 v{MK+j}, v{O+2*j}, v{O+2*j+1}')
    e.vm('pub3',f'buffer_store_dwordx2 {vr(MK,2)}, v5, s[12:15], s40 offen {SC}')
    e.vm('pub3',f'buffer_store_dwordx2 {vr(MK+2,2)}, v5, s[12:15], s40 offen offset:1024 {SC}')
    e('s_mov_b32 exec_hi, 0')
    e.vm('pub3',f'buffer_store_dwordx2 {vr(MK+4,2)}, v5, s[12:15], s40 offen offset:2048 {SC}')
    e('s_mov_b32 exec_hi, -1')
    stamp(6)
    e(f'''s_cmp_lt_u32 s30, 4
    s_cbranch_scc1 FINAL
    s_waitcnt vmcnt(0)
    s_barrier
    s_cmp_lg_u32 s30, 4
    s_cbranch_scc1 END
    v_mov_b32 v12, 1
    s_mov_b64 exec, 1
    buffer_store_dword v12, off, s[12:15], s85 offset:2048 {SC}
    s_endpgm
    FINAL:''')
    ACC=16; R=96; ND=4; NL=5
    acc=lambda p,t: ACC+(p*5+t)*4
    X=lambda s,p: R+36*s+4*p
    W=lambda s,t: R+36*s+16+4*t
    G=240
    e(f'''s_mul_i32 s35, s26, {PBS}
    s_lshl_b32 s38, s30, 12
    s_add_u32 s35, s35, s38
    s_add_u32 s35, s35, {WS_AP}
    s_add_u32 s36, s36, {NL*20480}
    v_lshlrev_b32 v11, 4, v13
    v_lshl_add_u32 v11, v14, 10, v11
    v_add_u32 v6, 4096, v8
    v_add_u32 v7, s37, v8
    s_lshl_b32 s39, s26, 8
    s_add_u32 s39, s39, {WS_G}''')
    for p in range(4):
        e(f'''s_add_u32 s{44+p}, s30, {p}
        s_and_b32 s{44+p}, s{44+p}, 3
        s_lshl_b32 s38, s{44+p}, 8
        v_add_u32 v{1+p}, s38, v11
        s_lshr_b32 s38, s38, 2
        v_lshl_add_u32 v{G+p}, v13, 2, s38''')
    e.wait(vm=['f2'])
    check(f2load,[9],1,-1)
    def loads(j):
        s=j%ND; L=[]
        for p in range(4): L.append(lambda p=p:e.vm(j,f'buffer_load_dwordx4 {vr(X(s,p),4)}, v{1+p}, s[12:15], s35 offen {SC}'))
        L.append('s_add_u32 s35, s35, 16384')
        if j>=NL:
            for t in range(5): L.append(lambda t=t:e.vm(j,f'buffer_load_dwordx4 {vr(W(s,t),4)}, v{8 if t<4 else 6}, s[12:15], s36 offen offset:{(t&3)*1024} {SC}'))
            L.append('s_add_u32 s36, s36, 20480')
        return L
    def wl(j): return [lambda t=t:e.ds(j,f'ds_read_b128 {vr(W(j%ND,t),4)}, v7 offset:{j*5120+t*1024}') for t in range(5)]
    for j in range(ND-1): e.run(loads(j))
    for p in range(4): e.vm('g',f'buffer_load_dword v{G+p}, v{G+p}, s[12:15], s39 offen {SC}')
    e.wait(vm=['pub3','wp']); e('s_barrier')
    e.run(wl(0))
    f3load=f'buffer_load_dword v9, v12, s[12:15], s83 offen {SC}'
    for j in range(17):
        s=j%ND
        nxt=loads(j+ND-1) if j+ND-1<17 else []
        if j+1<NL: nxt=wl(j+1)+nxt
        if j==7: nxt.insert(0,lambda:(e(f's_lshr_b32 s83, s26, 2\ns_lshl_b32 s83, s83, 7\ns_add_u32 s83, s83, {WS_F+2048}\nv_and_b32 v12, 31, v0\nv_lshlrev_b32 v12, 2, v12'),e.vm('f3',f3load)))
        e.wait(vm=[j]+(['f3'] if j==9 else []),ds=[j])
        if j==0: stamp(7)
        if j==9: check(f3load,[9],1,-1)
        if j==12:
            for p in range(4): e(f'v_sub_f32 v{G+p}, 1.0, v{G+p}')
            for t in range(5):
                for p in range(4):
                    for c in range(4): e(f'v_mul_f32 v{acc(p,t)+c}, v{acc(p,t)+c}, v{G+p}')
        m=[f'v_mfma_f32_16x16x32_bf16 {vr(acc(p,t),4)}, {vr(W(s,t),4)}, {vr(X(s,p),4)}, {vr(acc(p,t),4) if j else 0}' for t in range(5) for p in range(4)]
        e.run(weave(m,nxt,start=0,step=1 if len(nxt)>11 else 2))
    stamp(8)
    for p in range(1,4): e(f's_mul_i32 s38, s{44+p}, 15360\nv_add_u32 v{p}, s38, v8')
    e(f's_mul_i32 s38, s30, 15360\nv_add_u32 v4, s38, v8')
    for t in range(5):
        for p in range(1,4): e(f'ds_write_b128 v{p}, {vr(acc(p,t),4)} offset:{(p-1)*5120+t*1024}')
    e(f'''s_lshl_b32 s38, s26, 6
    s_lshl_b32 s39, s30, 4
    s_add_u32 s38, s38, s39
    s_mul_i32 s38, s38, 1280
    s_mul_i32 s39, s27, 160
    s_add_u32 s38, s38, s39
    v_mul_u32_u24 v11, 1280, v13
    v_lshl_add_u32 v11, v14, 3, v11
    s_waitcnt lgkmcnt(0)
    s_barrier''')
    for t in range(5):
        for q in range(3): e(f'ds_read_b128 {vr(R+(t*3+q)*4,4)}, v4 offset:{q*5120+t*1024}')
    for t in range(5):
        e(f's_waitcnt lgkmcnt({12-3*t})')
        b=R+t*12; a=acc(0,t)
        for c in range(4): e(f'v_add_f32 v{a+c}, v{a+c}, v{b+c}\nv_add_f32 v{b+4+c}, v{b+4+c}, v{b+8+c}')
        for c in range(4): e(f'v_add_f32 v{a+c}, v{a+c}, v{b+4+c}')
        e(f'v_cvt_pk_bf16_f32 v{a}, v{a}, v{a+1}\nv_cvt_pk_bf16_f32 v{a+1}, v{a+2}, v{a+3}')
        e(f'buffer_store_dwordx2 {vr(a,2)}, v11, s[8:11], s38 offen offset:{t*32}')
    stamp(9)
```

```python
from asmlib import *
import sys
WS_AP=0x800000; PBS=272*1024; OCT_O=192; WS_WP=0x1200000; WS_G=0x1500000; WS_F=0x1510000; WS_STAMP=0x1600000
PS=4128; SLOT=32768; WPL=61440
SC='sc1'
def gen(st=False,var=''):
    e=Q()
    def stamp(idx):
        if not st: return
        e(f'''s_memrealtime s[90:91]
        s_memtime s[94:95]
        s_waitcnt lgkmcnt(0)
        s_lshl_b32 s92, s2, 8
        s_lshl_b32 s93, s30, 5
        s_add_u32 s92, s92, s93
        s_add_u32 s92, s92, {WS_STAMP+(idx>>2)*0x10000+(idx&3)*4}
        v_mov_b32 v15, s90''')
        e.lq.clear()
        e.vm('st',f'buffer_store_dword v15, off, s[12:15], s92')
        e('v_mov_b32 v15, s94'); e.vm('st',f'buffer_store_dword v15, off, s[12:15], s92 offset:16')
    XR=lambda ks,pt:96+ks*8+pt*4
    WR=lambda f:16+(f%8)*4
    acc=lambda pt,t:48+(t*2+pt)*4
    nspin=[0]
    def check(load,regs,expect,lanes):
        i=nspin[0]; nspin[0]+=1
        e(f's_mov_b32 s88, 0\nSPIN{i}:')
        for r in regs[1:]: e(f'v_and_b32 v{regs[0]}, v{regs[0]}, v{r}')
        e(f'''v_cmp_ne_u32 vcc, {expect}, v{regs[0]}
        s_add_u32 s88, s88, 1
        s_nop 0
        s_and_b64 vcc, vcc, {lanes}
        s_cbranch_scc0 GO{i}
        s_cmp_gt_u32 s88, 0x4000
        s_cbranch_scc1 GO{i}
        s_sleep 1
        {load}
        s_waitcnt vmcnt(0)
        s_branch SPIN{i}
        GO{i}:''')
    e(f'''s_cmp_ge_u32 s2, 256
    s_cbranch_scc1 END
    s_load_dwordx4 s[40:43], s[0:1], 0
    s_load_dwordx2 s[44:45], s[0:1], 16
    s_load_dwordx8 s[48:55], s[0:1], 32
    s_load_dwordx4 s[56:59], s[0:1], 64
    s_load_dwordx2 s[12:13], s[0:1], 80
    v_lshrrev_b32 v1, 6, v0
    v_and_b32 v0, 63, v0
    v_readfirstlane_b32 s30, v1
    s_and_b32 s24, s2, 7
    s_lshr_b32 s25, s2, 3
    s_and_b32 s26, s24, 1
    s_lshl_b32 s26, s26, 3
    s_and_b32 s27, s25, 7
    s_add_u32 s26, s26, s27      ; rb
    s_lshr_b32 s27, s24, 1
    s_lshl_b32 s27, s27, 2
    s_lshr_b32 s28, s25, 3
    s_add_u32 s27, s27, s28      ; cs
    s_lshr_b32 s31, s30, 1       ; wm
    s_and_b32 s32, s30, 1        ; wn
    s_lshr_b32 s33, s30, 2       ; half
    s_and_b32 s34, s30, 3
    v_and_b32 v13, 15, v0        ; n
    v_lshrrev_b32 v14, 4, v0     ; g
    s_lshl_b32 s35, s26, 7
    s_lshl_b32 s36, s31, 5
    s_add_u32 s35, s35, s36
    s_add_u32 s35, s35, s32
    v_lshrrev_b32 v16, 3, v0
    v_lshl_add_u32 v16, v16, 1, s35
    v_mul_u32_u24 v16, 1280, v16
    v_and_b32 v17, 7, v0
    v_xor_b32 v17, v17, v14
    v_lshl_add_u32 v1, v17, 4, v16
    v_xor_b32 v17, 4, v17
    v_lshl_add_u32 v2, v17, 4, v16
    v_add_u32 v2, 20480, v2
    s_lshl_b32 s35, s33, 5
    s_and_b32 s36, s31, 1
    s_lshl_b32 s36, s36, 2
    s_add_u32 s35, s35, s36
    s_lshl_b32 s36, s32, 4
    s_add_u32 s35, s35, s36      ; 32kk+4s+16(w&1)
    v_add_u32 v16, s35, v14
    v_mul_u32_u24 v16, 3840, v16
    s_lshl_b32 s36, s27, 8
    v_add_u32 v16, s36, v16
    v_lshlrev_b32 v17, 1, v14
    v_xor_b32 v17, v17, v13
    v_lshl_add_u32 v3, v17, 4, v16
    v_xor_b32 v17, 8, v17
    v_lshl_add_u32 v4, v17, 4, v16
    v_add_u32 v4, {8*3840}, v4
    s_lshl_b32 s60, s30, 11
    s_mul_i32 s61, s30, 3072
    s_mov_b32 s62, 0
    s_mov_b32 s63, 0
    s_mov_b32 s64, 0
    s_mov_b32 s6, {2048*1280}
    s_mov_b32 s7, 0x20000
    s_mov_b32 s10, {640*3840}
    s_cmp_eq_u32 s27, 15
    s_cselect_b32 s10, 0, s10
    s_mov_b32 s11, 0x20000
    s_mov_b32 s14, 0x10000000
    s_mov_b32 s15, 0x20000
    s_waitcnt lgkmcnt(0)
    s_mov_b32 s4, s40
    s_mov_b32 s5, s41
    s_mov_b32 s8, s42
    s_mov_b32 s9, s43''')
    def dma(s):
        b=(s%5)*SLOT; t=f'D{s}'
        if s<10:
            return [lambda:(e(f's_add_u32 m0, s60, {b}'),e.vm(t,'buffer_load_dwordx4 v1, s[4:7], s62 offen lds')),
                    lambda:(e('s_add_u32 m0, m0, 1024'),e.vm(t,'buffer_load_dwordx4 v2, s[4:7], s62 offen lds')),
                    lambda:(e(f's_add_u32 m0, m0, {16384-1024}\ns_add_u32 s62, s62, 128'),e.vm(t,'buffer_load_dwordx4 v3, s[8:11], s63 offen lds')),
                    lambda:(e('s_add_u32 m0, m0, 1024'),e.vm(t,'buffer_load_dwordx4 v4, s[8:11], s63 offen lds'),e(f's_add_u32 s63, s63, {64*3840}'))]
        return [lambda:(e(f's_add_u32 m0, s61, {b}'),e.vm(t,'buffer_load_dwordx4 v1, s[16:19], s64 offen lds')),
                lambda:(e('s_add_u32 m0, m0, 1024'),e.vm(t,'buffer_load_dwordx4 v2, s[16:19], s64 offen lds')),
                lambda:(e('s_add_u32 m0, m0, 1024'),e.vm(t,'buffer_load_dwordx4 v3, s[16:19], s64 offen lds'),e(f's_add_u32 s64, s64, {64*3072}'))]
    stamp(0)
    e.run(dma(0))
    e(f'''s_cmp_eq_u32 s33, 0
    s_cselect_b32 s16, s48, s50
    s_cselect_b32 s17, s49, s51
    s_mov_b32 s18, {640*3072}
    s_mov_b32 s19, 0x20000
    v_lshrrev_b32 v16, 1, v13
    v_xor_b32 v16, v16, v14
    v_lshlrev_b32 v16, 4, v16
    v_lshl_add_u32 v16, v13, 7, v16
    s_lshl_b32 s35, s31, 12
    v_add_u32 v5, s35, v16
    v_xor_b32 v6, 64, v5
    v_lshrrev_b32 v16, 2, v0          ; 4g+r
    v_and_b32 v17, 7, v16
    v_lshlrev_b32 v17, 5, v17
    v_lshl_add_u32 v17, v16, 8, v17
    v_and_b32 v18, 3, v0
    v_lshl_add_u32 v17, v18, 3, v17
    s_lshl_b32 s35, s32, 7
    v_xor_b32 v7, s35, v17
    v_xor_b32 v8, 32, v7
    v_xor_b32 v9, 64, v7
    v_xor_b32 v10, 0x60, v7
    s_barrier''')
    e.run(dma(1))
    e(f'''s_lshl_b32 s65, s26, 4
    s_add_u32 s65, s65, s27
    s_lshl_b32 s65, s65, 2
    s_add_u32 s65, s65, {WS_F+1024}     ; F2 slot
    s_lshl_b32 s66, s2, 2
    s_add_u32 s66, s66, {WS_F}          ; F1 slot (F3 = +2048)
    v_mov_b32 v11, 0
    s_barrier''')
    e.run(dma(2))
    e('s_barrier')
    e.run(dma(3))
    e('s_cmp_lg_u32 s30, 0\ns_cbranch_scc1 NORST\ns_mov_b64 exec, 1')
    e(f'buffer_store_dword v11, off, s[12:15], s65 {SC}\nbuffer_store_dword v11, off, s[12:15], s66 {SC}\nbuffer_store_dword v11, off, s[12:15], s66 offset:2048 {SC}')
    e('s_mov_b64 exec, -1\nNORST:')
    SP,GX,GW,T=224,232,240,248
    e(f'''s_lshl_b32 s67, s2, 3
    s_add_u32 s67, s67, s30          ; u
    s_mul_i32 s68, s67, 3277
    s_lshr_b32 s68, s68, 16          ; ks=u/20
    s_mul_i32 s69, s68, 20
    s_sub_u32 s69, s67, s69          ; np
    s_cmp_lt_u32 s68, 48
    s_cselect_b32 s20, s52, s44
    s_cselect_b32 s21, s53, s45
    s_mov_b32 s22, {640*1280}
    s_cselect_b32 s22, {1536*1280}, s22
    s_mov_b32 s23, 0x20000
    s_cselect_b32 s70, 0, 48
    s_sub_u32 s70, s68, s70
    s_mul_i32 s70, s70, {32*1280}
    s_lshl_b32 s71, s69, 6
    s_add_u32 s70, s70, s71
    v_mul_u32_u24 v{T}, {8*1280}, v14
    v_lshl_add_u32 v{T}, v13, 2, v{T}
    v_add_u32 v{T+1}, {4*1280}, v{T}
    s_mov_b32 s72, s54
    s_mov_b32 s73, s55
    s_mov_b32 s74, 1280
    s_mov_b32 s75, 0x20000
    s_mul_i32 s71, s67, 1280
    v_lshlrev_b32 v{T+2}, 5, v0''')
    for j in range(8): e.vm('side',f'buffer_load_dword v{SP+j}, v{T+(j>>2)}, s[20:23], s70 offen offset:{(j&3)*1280}')
    for j in range(2):
        e.vm('side',f'buffer_load_dwordx4 {vr(GX+4*j,4)}, v{T+2}, s[4:7], s71 offen offset:{16*j}')
        e.vm('side',f'buffer_load_dwordx4 {vr(GW+4*j,4)}, v{T+2}, s[72:75], 0 offen offset:{16*j}')
    def side_finish():
        Z=T+3; L=[]
        L.append(f'v_mov_b32 v{Z}, 0\n'+'\n'.join(f'v_dot2c_f32_bf16 v{Z}, v{GX+j}, v{GW+j}' for j in range(8))+'\ns_mov_b32 s76, 0x05040100\ns_mov_b32 s77, 0x07060302\nv_cmp_gt_u32 vcc, 40, v0')
        L.append('\n'.join(f'v_perm_b32 v{GX+j}, v{SP+2*j+1}, v{SP+2*j}, s76\nv_perm_b32 v{GX+4+j}, v{SP+2*j+1}, v{SP+2*j}, s77' for j in range(4))+f'\nv_cndmask_b32 v{Z}, 0, v{Z}, vcc\ns_lshl_b32 s76, s69, 1\ns_add_u32 s77, s76, 1')
        for r,d in ((76,'quad_perm:[1,0,3,2]'),(77,'quad_perm:[2,3,0,1]')):
            L.append(f'''v_add_f32_dpp v{Z}, v{Z}, v{Z} {d} row_mask:0xf bank_mask:0xf
            s_mul_i32 s78, s{r}, 13108
            s_lshr_b32 s78, s78, 16
            s_mul_i32 s79, s78, 5
            s_sub_u32 s79, s{r}, s79
            s_mul_i32 s78, s78, 68
            s_add_u32 s78, s78, s68
            s_mul_i32 s78, s78, 5
            s_add_u32 s78, s78, s79
            s_lshl_b32 s{r}, s78, 10''')
        L.append(f'''v_add_f32_dpp v{Z}, v{Z}, v{Z} row_half_mirror row_mask:0xf bank_mask:0xf
        v_cmp_gt_u32 vcc, 8, v13
        v_mov_b32 v{T}, s76
        v_mov_b32 v{T+1}, s77
        v_add_f32_dpp v{Z}, v{Z}, v{Z} row_mirror row_mask:0xf bank_mask:0xf
        v_cndmask_b32 v{T}, v{T+1}, v{T}, vcc
        v_and_b32 v{T+1}, 7, v0
        v_lshl_add_u32 v{T}, v{T+1}, 5, v{T}
        v_lshl_add_u32 v{T}, v14, 8, v{T}
        v_readlane_b32 s76, v{Z}, 16
        v_readlane_b32 s77, v{Z}, 32
        s_mov_b32 s78, {WS_WP}
        s_cmp_ge_u32 s67, 1360
        s_cselect_b32 s78, 0x7ff00000, s78''')
        L.append(lambda:(e.vm('pub1',f'buffer_store_dwordx4 {vr(GX,4)}, v{T}, s[12:15], s78 offen {SC}'),e.vm('pub1',f'buffer_store_dwordx4 {vr(GX+4,4)}, v{T}, s[12:15], s78 offen offset:16 {SC}')))
        L.append(lambda:(e(f'''v_add_f32 v{Z}, s76, v{Z}
        v_add_f32 v{Z}, s77, v{Z}
        v_mul_f32 v{Z}, 0xbfb8aa3b, v{Z}
        v_exp_f32 v{Z}, v{Z}
        s_lshl_b32 s78, s67, 2
        s_add_u32 s78, s78, {WS_G}
        v_add_f32 v{Z}, 1.0, v{Z}
        v_rcp_f32 v{Z}, v{Z}
        s_mov_b64 exec, 1'''),e.vm('pub1',f'buffer_store_dword v{Z}, off, s[12:15], s78 {SC}'),e('s_mov_b64 exec, -1')))
        L.append(f'''s_mov_b32 s72, s58
        s_mov_b32 s73, s59
        s_mov_b32 s74, 256
        s_cmp_lg_u32 s30, 0
        s_cbranch_scc1 NOCNT
        s_and_b32 s78, s2, 3
        s_lshl_b32 s78, s78, 6
        v_mov_b32 v11, 1
        s_mov_b64 exec, 1
        buffer_atomic_add v11, off, s[72:75], s78 {SC}
        s_mov_b64 exec, -1
        NOCNT:''')
        return L
    def dmaB_addr():
        L=[f'''s_lshr_b32 s35, s34, 1
        s_lshl_b32 s35, s35, 5
        s_lshl_b32 s36, s32, 2
        s_add_u32 s35, s35, s36
        s_mul_i32 s35, s35, 3072
        s_mul_i32 s36, s27, 192
        s_add_u32 s35, s35, s36''']
        for i in range(3):
            L.append(f'''v_add_u32 v11, {64*i}, v0
            v_mul_u32_u24 v12, 5462, v11
            v_lshrrev_b32 v12, 16, v12       ; rl
            v_mul_u32_u24 v4, 12, v12
            v_sub_u32 v11, v11, v4           ; p
            v_lshrrev_b32 v4, 1, v12
            v_and_b32 v4, 2, v4
            v_xor_b32 v11, v11, v4
            v_and_b32 v4, 12, v12
            v_add_u32 v12, v12, v4           ; 8(rl>>2)+(rl&3)
            v_mul_u32_u24 v12, 3072, v12
            v_lshl_add_u32 v11, v11, 4, v12
            v_add_u32 v{1+i}, s35, v11''')
        return L
    rdB=f'''v_lshrrev_b32 v11, 2, v0
    v_mul_u32_u24 v11, 192, v11
    v_and_b32 v12, 3, v0
    v_lshl_add_u32 v11, v12, 3, v11
    v_and_b32 v12, 1, v14
    s_mul_i32 s35, s32, 3
    v_xor_b32 v7, s35, v12
    v_lshl_add_u32 v7, v7, 5, v11
    s_add_u32 s35, s35, 1
    v_xor_b32 v8, s35, v12
    v_lshl_add_u32 v8, v8, 5, v11
    s_add_u32 s35, s35, 1
    v_xor_b32 v9, s35, v12
    v_lshl_add_u32 v9, v9, 5, v11'''
    F=[]
    for s in range(20):
        for kk in range(2):
            for t in range(4 if s<10 else 6): F.append((s,kk,t))
    def reads(f):
        s,kk,t=F[f]; o=(s%5&1)*SLOT; L=[]
        if s<10:
            if t==0:
                for pt in range(2): L.append(f'ds_read_b128 {vr(XR(2*s+kk,pt),4)}, v{5+kk} offset:{o+pt*2048}')
            for h in range(2): L.append(f'ds_read_b64_tr_b16 {vr(WR(f)+2*h,2)}, v{7+t} offset:{o+16384+kk*8192+h*4096}')
        else:
            for h in range(2): L.append(f'ds_read_b64_tr_b16 {vr(WR(f)+2*h,2)}, v{7+(t>>1)} offset:{o+(t&1)*12288+kk*6144+h*3072}')
        return L
    def mf(f,pt):
        s,kk,t=F[f]; ks=(2*s+kk)%20
        a=vr(acc(pt,t),4)
        return f'v_mfma_f32_16x16x32_bf16 {a}, {vr(WR(f),4)}, {vr(XR(ks,pt),4)}, {a if ks else 0}'
    extra=[]
    AQ=96
    def kv_loads():
        L=[f'''s_and_b32 s80, s2, 31        ; head
        s_lshr_b32 s81, s2, 5        ; qb
        s_lshr_b32 s35, s34, 1
        s_add_u32 s35, s35, s81
        s_add_u32 s35, s35, 7
        s_and_b32 s35, s35, 7
        s_mul_i32 s35, s35, 480
        s_mul_i32 s82, s80, 5
        s_add_u32 s37, s33, 1
        s_mul_i32 s37, s37, 160
        s_add_u32 s35, s35, s82
        s_add_u32 s35, s35, s37
        s_lshl_b32 s35, s35, 11
        s_lshl_b32 s37, s32, 10
        s_add_u32 s35, s35, s37
        s_mul_i32 s37, s33, {5*PS}
        s_lshl_b32 s38, s34, 10
        s_add_u32 m0, s37, s38
        v_lshlrev_b32 v1, 4, v0''']
        for i in range(5): L.append(lambda:(e.vm('kv',f'buffer_load_dwordx4 v1, s[12:15], s35 offen {SC} lds'),e(f's_add_u32 m0, m0, {PS}\ns_add_u32 s35, s35, 2048')))
        L.append(f'''s_mul_i32 s38, s81, 480
        s_add_u32 s38, s38, s82
        s_lshl_b32 s38, s38, 11
        s_lshl_b32 s39, s30, 8
        s_add_u32 s38, s38, s39
        s_add_u32 s39, s38, 8192
        v_and_b32 v2, 31, v0       ; qq
        v_lshrrev_b32 v3, 5, v0    ; h
        v_lshlrev_b32 v11, 3, v2
        v_lshl_add_u32 v12, v3, 12, v11''')
        L.append(lambda:(e.vm('kv',f'buffer_load_dwordx2 {vr(AQ,2)}, v12, s[12:15], s38 offen {SC}'),e.vm('kv',f'buffer_load_dwordx2 {vr(AQ+2,2)}, v12, s[12:15], s38 offen offset:2048 {SC}')))
        L.append(lambda:(e.vm('kv',f'buffer_load_dwordx2 {vr(AQ+4,2)}, v11, s[12:15], s39 offen {SC}'),e(f'''s_lshl_b32 s38, s81, 10
        s_lshl_b32 s39, s30, 7
        s_add_u32 s38, s38, s39
        s_add_u32 s38, s38, {WS_G}
        v_lshlrev_b32 v11, 2, v2'''),e.vm('kv',f'buffer_load_dword v4, v11, s[12:15], s38 offen {SC}')))
        L.append(lambda:(e(f'''v_mov_b32 v104, 0x3f803f80
        v_mov_b32 v105, 0x3f803f80
        s_lshl_b32 s38, s30, 9
        v_lshl_add_u32 v11, v0, 3, s38'''),e.ds('ones',f'ds_write_b64 v11, v[104:105] offset:{10*PS}')))
        return L
    cntload=f'buffer_load_dword v104, v11, s[72:75], 0 offen {SC}'
    f1load=f'buffer_load_dwordx4 v[104:107], v11, s[12:15], s83 offen {SC}'
    def boundary(s):
        nonlocal extra
        e.run(extra); extra=[]
        tags=[f'D{s}']
        if s==4: tags.append('side')
        if s==13: tags.append('pub1')
        if s==15: tags.append('cnt')
        if s==18: tags.append('f1')
        e.wait(vm=tags); e('s_barrier')
        if s==0: stamp(1)
        if s==10: e(rdB)
        elif s and s%5 in (0,2,4):
            d=65536 if s%5 else -131072&0xffffffff
            for r in (range(5,11) if s<10 else range(7,10)): e(f'v_add_u32 v{r}, {hex(d)}, v{r}')
        if s==7: extra+=dmaB_addr()
        if 1<=s<=16: extra+=dma(s+3)
        if s==4: extra+=side_finish()
        if s==11: extra.insert(0,None)
        if s==12: extra.insert(0,lambda:(e('v_lshlrev_b32 v11, 6, v0'),e.vm('cnt',cntload)))
        if s==13:
            e(f's_cmp_lg_u32 s30, 0\ns_cbranch_scc1 NOF1\nv_mov_b32 v12, 1\ns_mov_b64 exec, 1\nbuffer_store_dword v12, off, s[12:15], s66 {SC}\ns_mov_b64 exec, -1\nNOF1:')
        if s==15: check(cntload,[104],64,15)
        if s==17: extra.append(lambda:(e(f'v_lshlrev_b32 v11, 4, v0\ns_mov_b32 s83, {WS_F}'),e.vm('f1',f1load)))
        if s==18:
            check(f1load,[104,105,106,107],1,-1)
            extra+=kv_loads()
        extra=[x for x in extra if x]
    LA=6
    def issue(f,between=None):
        if F[f][1]==0 and F[f][2]==0: boundary(F[f][0])
    boundary(0)
    for f in range(LA):
        for x in reads(f): e.ds(f,x)
    for f in range(len(F)):
        n=f+LA; r=[]
        if n<len(F):
            if F[n][1:]==(0,0): boundary(F[n][0])
            r=reads(n)
        e.wait(ds=[f])
        e(mf(f,0))
        for x in r[:len(r)//2]: e.ds(n,x)
        e(mf(f,1))
        for x in r[len(r)//2:]: e.ds(n,x)
        if extra: e.run([extra.pop(0)])
        if f==79:
            stamp(2)
            e(f'''s_lshr_b32 s35, s26, 1
            s_mul_i32 s35, s35, 480
            s_lshl_b32 s36, s27, 5
            s_add_u32 s35, s35, s36
            s_lshl_b32 s36, s32, 4
            s_add_u32 s35, s35, s36
            s_lshl_b32 s35, s35, 11
            s_and_b32 s36, s26, 1
            s_lshl_b32 s36, s36, 10
            s_add_u32 s35, s35, s36
            s_lshl_b32 s36, s31, 8
            s_add_u32 s35, s35, s36
            s_cmp_eq_u32 s27, 15
            s_cselect_b32 s35, 0x7ff00000, s35
            v_lshlrev_b32 v11, 4, v13
            v_lshl_add_u32 v11, v14, 11, v11''')
            for t in range(4):
                R=80+4*t
                for pt in range(2):
                    a=acc(pt,t); e(f'v_cvt_pk_bf16_f32 v{R+2*pt}, v{a}, v{a+1}\nv_cvt_pk_bf16_f32 v{R+2*pt+1}, v{a+2}, v{a+3}')
                e.vm('pub1',f'buffer_store_dwordx4 {vr(R,4)}, v11, s[12:15], s35 offen {SC}')
                e('s_add_u32 s35, s35, 8192')
    e.run(extra)
    stamp(3)
    e(f'''s_lshl_b32 s35, s26, 1
    s_add_u32 s35, s35, s33
    s_mul_i32 s35, s35, 272
    s_mul_i32 s36, s27, 12
    s_add_u32 s35, s35, s36
    s_mul_i32 s36, s32, 6
    s_add_u32 s35, s35, s36
    s_lshl_b32 s35, s35, 10
    s_and_b32 s36, s31, 1
    s_lshl_b32 s36, s36, 9
    s_add_u32 s35, s35, s36
    s_add_u32 s35, s35, {WS_AP}
    v_lshlrev_b32 v11, 5, v13
    v_and_b32 v12, 1, v14
    v_lshl_add_u32 v11, v12, 4, v11
    v_lshrrev_b32 v12, 1, v14
    v_lshl_add_u32 v11, v12, 10, v11
    s_mov_b32 s36, 0xbfb8aa3b''')
    for T in range(3):
        g=acc(0,2*T); u=acc(0,2*T+1); t=112; R=120+4*T
        for i in range(8): e(f'v_mul_f32 v{t+i}, s36, v{g+i}')
        for i in range(8): e(f'v_exp_f32 v{t+i}, v{t+i}\nv_mul_f32 v{g+i}, v{g+i}, v{u+i}')
        for i in range(8): e(f'v_add_f32 v{t+i}, 1.0, v{t+i}')
        for i in range(8): e(f'v_rcp_f32 v{t+i}, v{t+i}')
        for i in range(8): e(f'v_mul_f32 v{t+i}, v{g+i}, v{t+i}')
        for i in range(4): e(f'v_cvt_pk_bf16_f32 v{R+i}, v{t+2*i}, v{t+2*i+1}')
        e(f'v_permlane16_swap_b32 v{R}, v{R+2}\nv_permlane16_swap_b32 v{R+1}, v{R+3}')
        e.vm('pub2',f'buffer_store_dwordx4 {vr(R,4)}, v11, s[12:15], s35 offen {SC}')
        e('s_add_u32 s35, s35, 2048')
    from mega2 import tail
    tail(e,stamp,check,var)
    e('END:\ns_endpgm')
    return ('gated_mix__sliding_block__swiglu_ffn__prompt_kernel',e.text(),256,512,163840,256)
if __name__=='__main__':
    k=gen('stamp' in sys.argv,sys.argv[3] if len(sys.argv)>3 else '')
    s=module([k])
    if 'single' in sys.argv: s=s.replace(f'; @launch kernel={k[0]} ','; @launch ')
    open(sys.argv[1],'w').write(s)
```

```python
from asmlib import *
import sys
WS_AP=0x800000; PBS=272*1024; OCT_O=192; WS_WP=0x1200000; WS_G=0x1500000; WS_F=0x1510000; WS_STAMP=0x1600000
PS=4128; SLOT=32768; WPL=61440
SC='sc1'
def gen(st=False,var=''):
    e=Q()
    def stamp(idx):
        if not st: return
        if 'dbg' in var:
            e(f's_memrealtime s[90:91]\ns_waitcnt lgkmcnt(0)'); e.lq.clear()
            if idx==0: e('s_mov_b32 s96, s58\ns_mov_b32 s97, s59\ns_mov_b32 s98, 256\ns_mov_b32 s99, 0x20000\ns_mov_b32 s89, s90\ns_lshl_b32 s92, s2, 3\ns_add_u32 s92, s92, s30\ns_cmp_eq_u32 s92, 800\ns_cselect_b32 s98, 256, 0'); return
            e(f's_sub_u32 s90, s90, s89\nv_mov_b32 v15, s90')
            e.vm('st',f'buffer_store_dword v15, off, s[96:99], 0 offset:{idx*4}')
            return
        e(f'''s_memrealtime s[90:91]
        s_memtime s[94:95]
        s_waitcnt lgkmcnt(0)
        s_lshl_b32 s92, s2, 8
        s_lshl_b32 s93, s30, 5
        s_add_u32 s92, s92, s93
        s_add_u32 s92, s92, {WS_STAMP+(idx>>2)*0x10000+(idx&3)*4}
        v_mov_b32 v15, s90''')
        e.lq.clear()
        e.vm('st',f'buffer_store_dword v15, off, s[12:15], s92')
        e('v_mov_b32 v15, s94'); e.vm('st',f'buffer_store_dword v15, off, s[12:15], s92 offset:16')
    XR=lambda ks,pt:96+ks*8+pt*4
    WR=lambda f:16+(f%8)*4
    acc=lambda pt,t:48+(t*2+pt)*4
    nspin=[0]
    def check(load,regs,expect,lanes):
        i=nspin[0]; nspin[0]+=1
        e(f's_mov_b32 s88, 0\nSPIN{i}:')
        for r in regs[1:]: e(f'v_and_b32 v{regs[0]}, v{regs[0]}, v{r}')
        e(f'''v_cmp_gt_u32 vcc, {expect}, v{regs[0]}
        s_add_u32 s88, s88, 1
        s_nop 0
        s_and_b64 vcc, vcc, {lanes}
        s_cbranch_scc0 GO{i}
        s_cmp_gt_u32 s88, 0x4000
        s_cbranch_scc1 GO{i}
        s_sleep 1
        {load}
        s_waitcnt vmcnt(0)
        s_branch SPIN{i}
        GO{i}:''')
    e(f'''s_cmp_ge_u32 s2, 256
    s_cbranch_scc1 END
    s_load_dwordx4 s[40:43], s[0:1], 0
    s_load_dwordx2 s[44:45], s[0:1], 16
    s_load_dwordx8 s[48:55], s[0:1], 32
    s_load_dwordx4 s[56:59], s[0:1], 64
    s_load_dwordx2 s[12:13], s[0:1], 80
    v_lshrrev_b32 v1, 6, v0
    v_and_b32 v0, 63, v0
    v_readfirstlane_b32 s30, v1
    s_and_b32 s24, s2, 7
    s_lshr_b32 s25, s2, 3
    s_and_b32 s26, s24, 1
    s_lshl_b32 s26, s26, 3
    s_and_b32 s27, s25, 7
    s_add_u32 s26, s26, s27      ; rb
    s_lshr_b32 s27, s24, 1
    s_lshl_b32 s27, s27, 2
    s_lshr_b32 s28, s25, 3
    s_add_u32 s27, s27, s28      ; cs
    s_lshr_b32 s31, s30, 1       ; wm
    s_and_b32 s32, s30, 1        ; wn
    s_lshr_b32 s33, s30, 2       ; half
    s_and_b32 s34, s30, 3
    v_and_b32 v13, 15, v0        ; n
    v_lshrrev_b32 v14, 4, v0     ; g
    s_lshl_b32 s35, s26, 7
    s_lshl_b32 s36, s31, 5
    s_add_u32 s35, s35, s36
    s_add_u32 s35, s35, s32
    v_lshrrev_b32 v16, 3, v0
    v_lshl_add_u32 v16, v16, 1, s35
    v_mul_u32_u24 v16, 1280, v16
    v_and_b32 v17, 7, v0
    v_xor_b32 v17, v17, v14
    v_lshl_add_u32 v1, v17, 4, v16
    v_xor_b32 v17, 4, v17
    v_lshl_add_u32 v2, v17, 4, v16
    v_add_u32 v2, 20480, v2
    s_lshl_b32 s35, s33, 5
    s_and_b32 s36, s31, 1
    s_lshl_b32 s36, s36, 2
    s_add_u32 s35, s35, s36
    s_lshl_b32 s36, s32, 4
    s_add_u32 s35, s35, s36      ; 32kk+4s+16(w&1)
    v_add_u32 v16, s35, v14
    v_mul_u32_u24 v16, 3840, v16
    s_lshl_b32 s36, s27, 8
    v_add_u32 v16, s36, v16
    v_lshlrev_b32 v17, 1, v14
    v_xor_b32 v17, v17, v13
    v_lshl_add_u32 v3, v17, 4, v16
    v_xor_b32 v17, 8, v17
    v_lshl_add_u32 v4, v17, 4, v16
    v_add_u32 v4, {8*3840}, v4
    s_lshl_b32 s60, s30, 11
    s_mul_i32 s61, s30, 3072
    s_mov_b32 s62, 0
    s_mov_b32 s63, 0
    s_mov_b32 s64, 0
    s_mov_b32 s6, {2048*1280}
    s_mov_b32 s7, 0x20000
    s_mov_b32 s10, {640*3840}
    s_cmp_eq_u32 s27, 15
    s_cselect_b32 s10, 0, s10
    s_mov_b32 s11, 0x20000
    s_mov_b32 s14, 0x10000000
    s_mov_b32 s15, 0x20000
    s_waitcnt lgkmcnt(0)
    s_mov_b32 s4, s40
    s_mov_b32 s5, s41
    s_mov_b32 s8, s42
    s_mov_b32 s9, s43''')
    def dma(s):
        b=(s%5)*SLOT; t=f'D{s}'
        if s<10:
            return [lambda:(e(f's_add_u32 m0, s60, {b}'),e.vm(t,'buffer_load_dwordx4 v1, s[4:7], s62 offen lds')),
                    lambda:(e('s_add_u32 m0, m0, 1024'),e.vm(t,'buffer_load_dwordx4 v2, s[4:7], s62 offen lds')),
                    lambda:(e(f's_add_u32 m0, m0, {16384-1024}\ns_add_u32 s62, s62, 128'),e.vm(t,'buffer_load_dwordx4 v3, s[8:11], s63 offen lds')),
                    lambda:(e('s_add_u32 m0, m0, 1024'),e.vm(t,'buffer_load_dwordx4 v4, s[8:11], s63 offen lds'),e(f's_add_u32 s63, s63, {64*3840}'))]
        return [lambda:(e(f's_add_u32 m0, s61, {b}'),e.vm(t,'buffer_load_dwordx4 v1, s[16:19], s64 offen lds')),
                lambda:(e('s_add_u32 m0, m0, 1024'),e.vm(t,'buffer_load_dwordx4 v2, s[16:19], s64 offen lds')),
                lambda:(e('s_add_u32 m0, m0, 1024'),e.vm(t,'buffer_load_dwordx4 v3, s[16:19], s64 offen lds'),e(f's_add_u32 s64, s64, {64*3072}'))]
    stamp(0)
    e.run(dma(0))
    e(f'''s_cmp_eq_u32 s33, 0
    s_cselect_b32 s16, s48, s50
    s_cselect_b32 s17, s49, s51
    s_mov_b32 s18, {640*3072}
    s_mov_b32 s19, 0x20000
    v_lshrrev_b32 v16, 1, v13
    v_xor_b32 v16, v16, v14
    v_lshlrev_b32 v16, 4, v16
    v_lshl_add_u32 v16, v13, 7, v16
    s_lshl_b32 s35, s31, 12
    v_add_u32 v5, s35, v16
    v_xor_b32 v6, 64, v5
    v_lshrrev_b32 v16, 2, v0          ; 4g+r
    v_and_b32 v17, 7, v16
    v_lshlrev_b32 v17, 5, v17
    v_lshl_add_u32 v17, v16, 8, v17
    v_and_b32 v18, 3, v0
    v_lshl_add_u32 v17, v18, 3, v17
    s_lshl_b32 s35, s32, 7
    v_xor_b32 v7, s35, v17
    v_xor_b32 v8, 32, v7
    v_xor_b32 v9, 64, v7
    v_xor_b32 v10, 0x60, v7
    s_barrier''')
    e.run(dma(1))
    e(f'''s_lshl_b32 s65, s26, 4
    s_add_u32 s65, s65, s27
    s_lshl_b32 s65, s65, 2
    s_add_u32 s65, s65, {WS_F+1024}     ; F2 slot
    s_lshl_b32 s66, s2, 2
    s_add_u32 s66, s66, {WS_F}          ; F1 slot (F3 = +2048)
    v_mov_b32 v11, 0
    s_barrier''')
    e.run(dma(2))
    e('s_barrier')
    e.run(dma(3))
    e('s_cmp_lg_u32 s30, 0\ns_cbranch_scc1 NORST\ns_mov_b64 exec, 1')
    e(f'buffer_store_dword v11, off, s[12:15], s65 {SC}\nbuffer_store_dword v11, off, s[12:15], s66 {SC}\nbuffer_store_dword v11, off, s[12:15], s66 offset:2048 {SC}')
    e('s_mov_b64 exec, -1\nNORST:')
    SP,GX,GW,T=224,232,240,248
    e(f'''s_lshl_b32 s67, s2, 3
    s_add_u32 s67, s67, s30          ; u
    s_mul_i32 s68, s67, 3277
    s_lshr_b32 s68, s68, 16          ; ks=u/20
    s_mul_i32 s69, s68, 20
    s_sub_u32 s69, s67, s69          ; np
    s_cmp_lt_u32 s68, 48
    s_cselect_b32 s20, s52, s44
    s_cselect_b32 s21, s53, s45
    s_mov_b32 s22, {640*1280}
    s_cselect_b32 s22, {1536*1280}, s22
    s_mov_b32 s23, 0x20000
    s_cselect_b32 s70, 0, 48
    s_sub_u32 s70, s68, s70
    s_mul_i32 s70, s70, {32*1280}
    s_lshl_b32 s71, s69, 6
    s_add_u32 s70, s70, s71
    v_mul_u32_u24 v{T}, {8*1280}, v14
    v_lshl_add_u32 v{T}, v13, 2, v{T}
    v_add_u32 v{T+1}, {4*1280}, v{T}
    s_mov_b32 s72, s54
    s_mov_b32 s73, s55
    s_mov_b32 s74, 1280
    s_mov_b32 s75, 0x20000
    s_mul_i32 s71, s67, 1280
    v_lshlrev_b32 v{T+2}, 5, v0''')
    for j in range(8): e.vm('side',f'buffer_load_dword v{SP+j}, v{T+(j>>2)}, s[20:23], s70 offen offset:{(j&3)*1280}')
    for j in range(2):
        e.vm('side',f'buffer_load_dwordx4 {vr(GX+4*j,4)}, v{T+2}, s[4:7], s71 offen offset:{16*j}')
        e.vm('side',f'buffer_load_dwordx4 {vr(GW+4*j,4)}, v{T+2}, s[72:75], 0 offen offset:{16*j}')
    def side_finish():
        Z=T+3; L=[]
        L.append(f'v_mov_b32 v{Z}, 0\n'+'\n'.join(f'v_dot2c_f32_bf16 v{Z}, v{GX+j}, v{GW+j}' for j in range(8))+'\ns_mov_b32 s76, 0x05040100\ns_mov_b32 s77, 0x07060302\nv_cmp_gt_u32 vcc, 40, v0')
        L.append('\n'.join(f'v_perm_b32 v{GX+j}, v{SP+2*j+1}, v{SP+2*j}, s76\nv_perm_b32 v{GX+4+j}, v{SP+2*j+1}, v{SP+2*j}, s77' for j in range(4))+f'\nv_cndmask_b32 v{Z}, 0, v{Z}, vcc\ns_lshl_b32 s76, s69, 1\ns_add_u32 s77, s76, 1')
        for r,d in ((76,'quad_perm:[1,0,3,2]'),(77,'quad_perm:[2,3,0,1]')):
            L.append(f'''v_add_f32_dpp v{Z}, v{Z}, v{Z} {d} row_mask:0xf bank_mask:0xf
            s_mul_i32 s78, s{r}, 13108
            s_lshr_b32 s78, s78, 16
            s_mul_i32 s79, s78, 5
            s_sub_u32 s79, s{r}, s79
            s_mul_i32 s78, s78, 68
            s_add_u32 s78, s78, s68
            s_mul_i32 s78, s78, 5
            s_add_u32 s78, s78, s79
            s_lshl_b32 s{r}, s78, 10''')
        L.append(f'''v_add_f32_dpp v{Z}, v{Z}, v{Z} row_half_mirror row_mask:0xf bank_mask:0xf
        v_cmp_gt_u32 vcc, 8, v13
        v_mov_b32 v{T}, s76
        v_mov_b32 v{T+1}, s77
        v_add_f32_dpp v{Z}, v{Z}, v{Z} row_mirror row_mask:0xf bank_mask:0xf
        v_cndmask_b32 v{T}, v{T+1}, v{T}, vcc
        v_and_b32 v{T+1}, 7, v0
        v_lshl_add_u32 v{T}, v{T+1}, 5, v{T}
        v_lshl_add_u32 v{T}, v14, 8, v{T}
        v_readlane_b32 s76, v{Z}, 16
        v_readlane_b32 s77, v{Z}, 32
        s_mov_b32 s78, {WS_WP}
        s_cmp_ge_u32 s67, 1360
        s_cselect_b32 s78, 0x7ff00000, s78''')
        L.append(lambda:(e.vm('pub1',f'buffer_store_dwordx4 {vr(GX,4)}, v{T}, s[12:15], s78 offen {SC}'),e.vm('pub1',f'buffer_store_dwordx4 {vr(GX+4,4)}, v{T}, s[12:15], s78 offen offset:16 {SC}')))
        L.append(lambda:(e(f'''v_add_f32 v{Z}, s76, v{Z}
        v_add_f32 v{Z}, s77, v{Z}
        v_mul_f32 v{Z}, 0xbfb8aa3b, v{Z}
        v_exp_f32 v{Z}, v{Z}
        s_lshl_b32 s78, s67, 2
        s_add_u32 s78, s78, {WS_G}
        v_add_f32 v{Z}, 1.0, v{Z}
        v_rcp_f32 v{Z}, v{Z}
        s_mov_b64 exec, 1'''),e.vm('pub1',f'buffer_store_dword v{Z}, off, s[12:15], s78 {SC}'),e('s_mov_b64 exec, -1')))
        L.append(f'''s_mov_b32 s72, s58
        s_mov_b32 s73, s59
        s_mov_b32 s74, 256
        s_cmp_lg_u32 s30, 0
        s_cbranch_scc1 NOCNT
        s_and_b32 s78, s2, 3
        s_lshl_b32 s78, s78, 6
        v_mov_b32 v11, 1
        s_mov_b64 exec, 1
        buffer_atomic_add v11, off, s[72:75], s78 {SC}
        s_mov_b64 exec, -1
        NOCNT:''')
        return L
    def dmaB_addr():
        L=[f'''s_lshr_b32 s35, s34, 1
        s_lshl_b32 s35, s35, 5
        s_lshl_b32 s36, s32, 2
        s_add_u32 s35, s35, s36
        s_mul_i32 s35, s35, 3072
        s_mul_i32 s36, s27, 192
        s_add_u32 s35, s35, s36''']
        for i in range(3):
            L.append(f'''v_add_u32 v11, {64*i}, v0
            v_mul_u32_u24 v12, 5462, v11
            v_lshrrev_b32 v12, 16, v12       ; rl
            v_mul_u32_u24 v4, 12, v12
            v_sub_u32 v11, v11, v4           ; p
            v_lshrrev_b32 v4, 1, v12
            v_and_b32 v4, 2, v4
            v_xor_b32 v11, v11, v4
            v_and_b32 v4, 12, v12
            v_add_u32 v12, v12, v4           ; 8(rl>>2)+(rl&3)
            v_mul_u32_u24 v12, 3072, v12
            v_lshl_add_u32 v11, v11, 4, v12
            v_add_u32 v{1+i}, s35, v11''')
        return L
    rdB=f'''v_lshrrev_b32 v11, 2, v0
    v_mul_u32_u24 v11, 192, v11
    v_and_b32 v12, 3, v0
    v_lshl_add_u32 v11, v12, 3, v11
    v_and_b32 v12, 1, v14
    s_mul_i32 s35, s32, 3
    v_xor_b32 v7, s35, v12
    v_lshl_add_u32 v7, v7, 5, v11
    s_add_u32 s35, s35, 1
    v_xor_b32 v8, s35, v12
    v_lshl_add_u32 v8, v8, 5, v11
    s_add_u32 s35, s35, 1
    v_xor_b32 v9, s35, v12
    v_lshl_add_u32 v9, v9, 5, v11'''
    F=[]
    for s in range(20):
        for kk in range(2):
            for t in range(4 if s<10 else 6): F.append((s,kk,t))
    def reads(f):
        s,kk,t=F[f]; o=(s%5&1)*SLOT; L=[]
        if s<10:
            if t==0:
                for pt in range(2): L.append(f'ds_read_b128 {vr(XR(2*s+kk,pt),4)}, v{5+kk} offset:{o+pt*2048}')
            for h in range(2): L.append(f'ds_read_b64_tr_b16 {vr(WR(f)+2*h,2)}, v{7+t} offset:{o+16384+kk*8192+h*4096}')
        else:
            for h in range(2): L.append(f'ds_read_b64_tr_b16 {vr(WR(f)+2*h,2)}, v{7+(t>>1)} offset:{o+(t&1)*12288+kk*6144+h*3072}')
        return L
    def mf(f,pt):
        s,kk,t=F[f]; ks=(2*s+kk)%20
        a=vr(acc(pt,t),4)
        return f'v_mfma_f32_16x16x32_bf16 {a}, {vr(WR(f),4)}, {vr(XR(ks,pt),4)}, {a if ks else 0}'
    extra=[]
    AQ=96
    def kv_loads():
        L=[f'''s_and_b32 s80, s2, 31        ; head
        s_lshr_b32 s81, s2, 5        ; qb
        s_lshr_b32 s35, s34, 1
        s_add_u32 s35, s35, s81
        s_add_u32 s35, s35, 7
        s_and_b32 s35, s35, 7
        s_mul_i32 s35, s35, 480
        s_mul_i32 s82, s80, 5
        s_add_u32 s37, s33, 1
        s_mul_i32 s37, s37, 160
        s_add_u32 s35, s35, s82
        s_add_u32 s35, s35, s37
        s_lshl_b32 s35, s35, 11
        s_lshl_b32 s37, s32, 10
        s_add_u32 s35, s35, s37
        s_mul_i32 s37, s33, {5*PS}
        s_lshl_b32 s38, s34, 10
        s_add_u32 m0, s37, s38
        v_lshlrev_b32 v1, 4, v0''']
        for i in range(5): L.append(lambda:(e.vm('kv',f'buffer_load_dwordx4 v1, s[12:15], s35 offen {SC} lds'),e(f's_add_u32 m0, m0, {PS}\ns_add_u32 s35, s35, 2048')))
        L.append(f'''s_mul_i32 s38, s81, 480
        s_add_u32 s38, s38, s82
        s_lshl_b32 s38, s38, 11
        s_lshl_b32 s39, s30, 8
        s_add_u32 s38, s38, s39
        s_add_u32 s39, s38, 8192
        v_and_b32 v2, 31, v0       ; qq
        v_lshrrev_b32 v3, 5, v0    ; h
        v_lshlrev_b32 v11, 3, v2
        v_lshl_add_u32 v12, v3, 12, v11''')
        L.append(lambda:(e.vm('kv',f'buffer_load_dwordx2 {vr(AQ,2)}, v12, s[12:15], s38 offen {SC}'),e.vm('kv',f'buffer_load_dwordx2 {vr(AQ+2,2)}, v12, s[12:15], s38 offen offset:2048 {SC}')))
        L.append(lambda:(e.vm('kv',f'buffer_load_dwordx2 {vr(AQ+4,2)}, v11, s[12:15], s39 offen {SC}'),e(f'''s_lshl_b32 s38, s81, 10
        s_lshl_b32 s39, s30, 7
        s_add_u32 s38, s38, s39
        s_add_u32 s38, s38, {WS_G}
        v_lshlrev_b32 v11, 2, v2'''),e.vm('kv',f'buffer_load_dword v4, v11, s[12:15], s38 offen {SC}')))
        L.append(lambda:(e(f'''v_mov_b32 v104, 0x3f803f80
        v_mov_b32 v105, 0x3f803f80
        s_lshl_b32 s38, s30, 9
        v_lshl_add_u32 v11, v0, 3, s38'''),e.ds('ones',f'ds_write_b64 v11, v[104:105] offset:{10*PS}')))
        return L
    cntload=f'buffer_load_dword v104, v11, s[72:75], 0 offen {SC}'
    f1load=f'buffer_load_dwordx4 v[104:107], v11, s[12:15], s83 offen {SC}'
    def boundary(s):
        nonlocal extra
        e.run(extra); extra=[]
        tags=[f'D{s}']
        if s==4: tags.append('side')
        if s==13: tags.append('pub1')
        if s==15: tags.append('cnt')
        if s==18: tags.append('f1')
        e.wait(vm=tags); e('s_barrier')
        if s==0: stamp(1)
        if s==10: e(rdB)
        elif s and s%5 in (0,2,4):
            d=65536 if s%5 else -131072&0xffffffff
            for r in (range(5,11) if s<10 else range(7,10)): e(f'v_add_u32 v{r}, {hex(d)}, v{r}')
        if s==7: extra+=dmaB_addr()
        if 1<=s<=16: extra+=dma(s+3)
        if s==4: extra+=side_finish()
        if s==11: extra.insert(0,None)
        if s==12: extra.insert(0,lambda:(e('v_lshlrev_b32 v11, 6, v0'),e.vm('cnt',cntload)))
        if s==13:
            e(f's_cmp_lg_u32 s30, 0\ns_cbranch_scc1 NOF1\nv_mov_b32 v12, 1\ns_mov_b64 exec, 1\nbuffer_store_dword v12, off, s[12:15], s66 {SC}\ns_mov_b64 exec, -1\nNOF1:')
        if s==15: check(cntload,[104],64,15)
        if s==17: extra.append(lambda:(e(f'v_lshlrev_b32 v11, 4, v0\ns_mov_b32 s83, {WS_F}'),e.vm('f1',f1load)))
        if s==18:
            check(f1load,[104,105,106,107],1,-1)
            extra+=kv_loads()
        extra=[x for x in extra if x]
    LA=6
    def issue(f,between=None):
        if F[f][1]==0 and F[f][2]==0: boundary(F[f][0])
    boundary(0)
    for f in range(LA):
        for x in reads(f): e.ds(f,x)
    for f in range(len(F)):
        n=f+LA; r=[]
        if n<len(F):
            if F[n][1:]==(0,0): boundary(F[n][0])
            r=reads(n)
        e.wait(ds=[f])
        e(mf(f,0))
        for x in r[:len(r)//2]: e.ds(n,x)
        e(mf(f,1))
        for x in r[len(r)//2:]: e.ds(n,x)
        if extra: e.run([extra.pop(0)])
        if f==79:
            stamp(2)
            e(f'''s_lshr_b32 s35, s26, 1
            s_mul_i32 s35, s35, 480
            s_lshl_b32 s36, s27, 5
            s_add_u32 s35, s35, s36
            s_lshl_b32 s36, s32, 4
            s_add_u32 s35, s35, s36
            s_lshl_b32 s35, s35, 11
            s_and_b32 s36, s26, 1
            s_lshl_b32 s36, s36, 10
            s_add_u32 s35, s35, s36
            s_lshl_b32 s36, s31, 8
            s_add_u32 s35, s35, s36
            s_cmp_eq_u32 s27, 15
            s_cselect_b32 s35, 0x7ff00000, s35
            v_lshlrev_b32 v11, 4, v13
            v_lshl_add_u32 v11, v14, 11, v11''')
            for t in range(4):
                R=80+4*t
                for pt in range(2):
                    a=acc(pt,t); e(f'v_cvt_pk_bf16_f32 v{R+2*pt}, v{a}, v{a+1}\nv_cvt_pk_bf16_f32 v{R+2*pt+1}, v{a+2}, v{a+3}')
                e.vm('pub1',f'buffer_store_dwordx4 {vr(R,4)}, v11, s[12:15], s35 offen {SC}')
                e('s_add_u32 s35, s35, 8192')
    e.run(extra)
    stamp(3)
    e(f'''s_lshl_b32 s35, s26, 1
    s_add_u32 s35, s35, s33
    s_mul_i32 s35, s35, 272
    s_mul_i32 s36, s27, 12
    s_add_u32 s35, s35, s36
    s_mul_i32 s36, s32, 6
    s_add_u32 s35, s35, s36
    s_lshl_b32 s35, s35, 10
    s_and_b32 s36, s31, 1
    s_lshl_b32 s36, s36, 9
    s_add_u32 s35, s35, s36
    s_add_u32 s35, s35, {WS_AP}
    v_lshlrev_b32 v11, 5, v13
    v_and_b32 v12, 1, v14
    v_lshl_add_u32 v11, v12, 4, v11
    v_lshrrev_b32 v12, 1, v14
    v_lshl_add_u32 v11, v12, 10, v11
    s_mov_b32 s36, 0xbfb8aa3b''')
    for T in range(3):
        g=acc(0,2*T); u=acc(0,2*T+1); t=112; R=120+4*T
        for i in range(8): e(f'v_mul_f32 v{t+i}, s36, v{g+i}')
        for i in range(8): e(f'v_exp_f32 v{t+i}, v{t+i}\nv_mul_f32 v{g+i}, v{g+i}, v{u+i}')
        for i in range(8): e(f'v_add_f32 v{t+i}, 1.0, v{t+i}')
        for i in range(8): e(f'v_rcp_f32 v{t+i}, v{t+i}')
        for i in range(8): e(f'v_mul_f32 v{t+i}, v{g+i}, v{t+i}')
        for i in range(4): e(f'v_cvt_pk_bf16_f32 v{R+i}, v{t+2*i}, v{t+2*i+1}')
        e(f'v_permlane16_swap_b32 v{R}, v{R+2}\nv_permlane16_swap_b32 v{R+1}, v{R+3}')
        e.vm('pub2',f'buffer_store_dwordx4 {vr(R,4)}, v11, s[12:15], s35 offen {SC}')
        e('s_add_u32 s35, s35, 2048')
    from mega2 import tail
    tail(e,stamp,check,var)
    e('END:\ns_endpgm')
    return ('gated_mix__sliding_block__swiglu_ffn__prompt_kernel',e.text(),256,512,163840,256)
if __name__=='__main__':
    k=gen('stamp' in sys.argv,' '.join(sys.argv[2:]))
    s=module([k])
    if 'single' in sys.argv: s=s.replace(f'; @launch kernel={k[0]} ','; @launch ')
    open(sys.argv[1],'w').write(s)
```

```python
import re
TRANS=('v_exp_f32','v_log_f32','v_rcp_f32','v_rsq_f32','v_sqrt_f32')
def regs(tok,kind):
    tok=tok.strip().lstrip('-')
    tok=tok.replace('abs(','').replace(')','').replace('|','')
    m=re.fullmatch(kind+r'(\d+)',tok)
    if m: return {int(m.group(1))}
    m=re.fullmatch(kind+r'\[(\d+):(\d+)\]',tok)
    if m: return set(range(int(m.group(1)),int(m.group(2))+1))
    if kind=='s' and tok in('vcc','vcc_lo','vcc_hi'): return {106,107}
    return set()
def parse(line):
    l=line.split(';')[0].strip()
    if not l or l.endswith(':') or l.startswith('.'): return None
    p=l.split(None,1); op=p[0]
    ops=[]
    if len(p)>1:
        for o in p[1].split(','):
            ops.append(o.strip().split(' ')[0])
    d=dict(op=op,vr=set(),vw=set(),sr=set(),sw=set(),cls='other',C=set(),AB=set(),m0w=False,n=1,dpp=('quad_perm' in l or 'row_' in l))
    V=lambda o:regs(o,'v'); S=lambda o:regs(o,'s')
    if op=='s_nop': d['n']=int(ops[0])+1
    elif op.startswith('v_mfma'):
        d['cls']='mfma'; d['vw']=V(ops[0]); d['AB']=V(ops[1])|V(ops[2]); d['C']=V(ops[3]); d['vr']=d['AB']|d['C']
        d['passes']=8 if '32x32' in op else 4
    elif op.startswith('v_'):
        d['cls']='valu'
        if op.startswith('v_cmp'):
            d['sw']=S(ops[0]); src=ops[1:]
        elif op.startswith(('v_readfirstlane','v_readlane')):
            d['sw']=S(ops[0]); src=ops[1:]
        elif op.startswith(('v_permlane','v_swap')):
            d['vw']=V(ops[0])|V(ops[1]); src=ops
        else:
            d['vw']=V(ops[0]); src=ops[1:]
            if op.startswith(('v_fmac','v_dot2c')): src=ops
        for o in src: d['vr']|=V(o); d['sr']|=S(o)
    elif op.startswith('buffer_') or op.startswith('global_'):
        d['cls']='vmem'
        d['lds']=' lds' in l
        if op.startswith('buffer_load') and not d['lds']:
            d['vw']=V(ops[0]); src=ops[1:]
        else: src=ops
        for o in src: d['vr']|=V(o); d['sr']|=S(o)
        if op.startswith('buffer_store') and ('x4' in op or 'x3' in op): d['wide']=V(ops[0])
    elif op.startswith('ds_'):
        d['cls']='ds'
        if op.startswith(('ds_read','ds_bperm')): d['vw']=V(ops[0]); src=ops[1:]
        else: src=ops
        for o in src: d['vr']|=V(o)
    elif op.startswith('s_'):
        d['cls']='salu'
        if ops and ops[0]=='m0': d['m0w']=True
        for o in ops[1:]: d['sr']|=S(o)
        if op.startswith('s_cmp'): d['sr']|=S(ops[0])
    return d
def need(p,c):
    n=0
    if p['cls']=='valu':
        if c['cls']=='mfma' and p['vw']&c['vr']: n=max(n,2)
        if c['cls']=='valu':
            if p['op'].startswith(TRANS) and p['vw']&c['vr']: n=max(n,1)
            if (c['op'].startswith('v_permlane') or c['dpp']) and p['vw']&c['vr']: n=max(n,2)
            if c['op'].startswith(('v_readfirstlane','v_readlane')) and p['vw']&c['vr']: n=max(n,1)
            if p['sw']&c['sr']: n=max(n,2)
            if p['op'].startswith('v_dot2') and p['op']!=c['op'] and p['vw']&(c['vr']|c['vw']): n=max(n,3)
        if c['cls']=='vmem' and p['sw']&c['sr']: n=max(n,5)
        if c['cls']=='salu' and p['sw']&c['sr']: n=max(n,2)
    if p['cls']=='mfma':
        big=p['passes']==8
        if c['cls']=='mfma':
            if p['vw']&c['AB']: n=max(n,12 if big else 8)
            if p['vw']&c['C'] and (p['vw']!=c['C'] or p['passes']!=c['passes']): n=max(n,10 if big else 6)
            if p['vw']&c['vw'] and not (p['vw']&c['C']): n=max(n,12 if big else 8)
        elif c['cls'] in('valu','vmem','ds'):
            if p['vw']&(c['vr']|c['vw']): n=max(n,12 if big else 8)
            if c['cls']=='valu' and p['C']&c['vw']: n=max(n,7 if big else 3)
    if p.get('wide') and p['wide']&c['vw']: n=max(n,2)
    if p['m0w'] and c['cls']=='vmem' and c.get('lds'): n=max(n,1)
    return n
def pad(lines):
    out=[]; hs=[[]]; saved={}
    def push(c):
        for h in hs:
            h.append(c); del h[:-24]
    for line in lines:
        c=parse(line)
        if c is None:
            out.append(line)
            l=line.strip()
            if l.endswith(':') and l[:-1] in saved: hs+=saved.pop(l[:-1])
            continue
        req=0
        for h in hs:
            dist=0
            for p in reversed(h):
                if dist>=20: break
                req=max(req,need(p,c)-dist); dist+=p['n']
        if req>0:
            out.append(f'    s_nop {req-1}'); push(parse(f's_nop {req-1}'))
        out.append(line); push(c)
        u=[]
        for h in hs:
            if not any(len(h)==len(x) and all(i is j for i,j in zip(h,x)) for x in u): u.append(h)
        hs[:]=u
        if c['op'].startswith(('s_cbranch','s_branch')):
            saved.setdefault(line.split()[1],[]).extend([list(h) for h in hs])
    return out
class E:
    def __init__(s): s.l=[]
    def __call__(s,t):
        for x in t.strip('\n').split('\n'):
            x=x.strip()
            if x: s.l.append(x if x.endswith(':') else '    '+x)
    def text(s): return '\n'.join(pad(s.l))+'\n'
def vr(a,n): return f'v{a}' if n==1 else f'v[{a}:{a+n-1}]'
def weave(main,fill,start=0,step=1):
    out=[]; f=list(fill);
    for i,m in enumerate(main):
        out.append(m)
        if i>=start and (i-start)%step==0 and f: out.append(f.pop(0))
    out+=f
    return out
def desc(name,vgpr,sgpr=102):
    acc=(vgpr+3)//4*4
    return f""".p2align 6
.amdhsa_kernel {name}
  .amdhsa_next_free_vgpr {vgpr}
  .amdhsa_next_free_sgpr {sgpr}
  .amdhsa_accum_offset {acc}
  .amdhsa_group_segment_fixed_size 0
  .amdhsa_kernarg_size 88
  .amdhsa_user_sgpr_count 2
  .amdhsa_user_sgpr_kernarg_segment_ptr 1
  .amdhsa_system_sgpr_workgroup_id_x 1
.end_amdhsa_kernel
"""
def module(kernels):
    hdr=open('gated_mix__sliding_block__swiglu_ffn__prompt.s.ref').read().split('; Override')[0]
    s=hdr+''.join(f'; @launch kernel={k[0]} grid=({k[2]},1,1) block=({k[3]},1,1) lds={k[4]}\n' for k in kernels)
    s+='.amdgcn_target "amdgcn-amd-amdhsa--gfx950"\n.text\n'
    seen=[]
    for k in kernels:
        if k[0] in seen: continue
        seen.append(k[0])
        s+=f'.globl {k[0]}\n.p2align 8\n.type {k[0]},@function\n{k[0]}:\n{k[1]}'
    s+='.section .rodata,"a"\n'
    seen=[]
    for k in kernels:
        if k[0] in seen: continue
        seen.append(k[0]); s+=desc(k[0],k[5])
    return s
class Q(E):
    def __init__(s): super().__init__(); s.vq=[]; s.lq=[]; s.mark=('cnt','f1')
    def vm(s,tag,t): s(t); s.vq.append(tag)
    def ds(s,tag,t): s(t); s.lq.append(tag)
    def _n(s,q,tags):
        idx=[i for i,x in enumerate(q) if x in tags]
        if not idx: return None
        del q[:idx[-1]+1]; return len([x for x in q if x not in s.mark])
    def wait(s,vm=(),ds=()):
        a=s._n(s.vq,vm); b=s._n(s.lq,ds); p=[]
        if a is not None: p.append(f'vmcnt({min(a,63)})')
        if b is not None: p.append(f'lgkmcnt({min(b,15)})')
        if p: s('s_waitcnt '+' '.join(p))
    def run(s,items):
        for it in items:
            if callable(it): it()
            else: s(it)
```

```python
from asmlib import *
from mega import *
MK=104
def setup():
    L=[f'''v_and_b32 v11, 19, v2
    v_and_b32 v12, 4, v2
    v_lshl_add_u32 v11, v12, 1, v11
    v_and_b32 v12, 8, v2
    v_lshrrev_b32 v12, 1, v12
    v_add_u32 v11, v12, v11       ; pi(m)''',f'''s_lshl_b32 s41, s30, 8
    v_lshl_add_u32 v11, v11, 3, s41
    v_add_u32 v6, {4*PS}, v11
    v_mul_u32_u24 v12, {2*PS}, v3
    v_add_u32 v5, v12, v11''',f'''v_and_b32 v11, 1, v14
    v_and_b32 v12, 3, v0
    v_lshl_add_u32 v11, v11, 2, v12
    v_min_u32 v11, 5, v11
    v_add_u32 v11, 5, v11
    v_mul_u32_u24 v11, {PS}, v11''',f'''v_bfe_u32 v12, v0, 2, 2
    v_lshl_add_u32 v12, v3, 3, v12
    v_lshl_add_u32 v12, v12, 3, s41
    v_add_u32 v10, v11, v12
    v_lshlrev_b32 v11, 3, v3
    v_sub_u32 v11, v2, v11      ; qq-8h''',f'''v_mov_b32 v12, 0xffff
    v_mov_b32 v102, 0xffff0000
    s_mov_b32 s8, s56
    s_mov_b32 s9, s57
    s_mov_b32 s10, {2048*1280}
    s_lshr_b32 s86, s24, 1
    s_lshl_b32 s86, s86, 3
    s_and_b32 s87, s25, 7
    s_add_u32 s86, s86, s87      ; pb
    s_and_b32 s87, s24, 1
    s_lshl_b32 s87, s87, 2
    s_add_u32 s87, s87, s28      ; nc
    s_mul_i32 s76, s87, 68
    s_add_u32 s76, s76, s34
    s_mul_i32 s76, s76, 5120
    s_add_u32 s76, s76, {WS_WP}  ; W offset
    s_mul_i32 s77, s34, 25600
    s_add_u32 s77, s77, {WPL}''']
    for r in range(0,16,4):
        L.append('\n'.join(f'v_cmp_le_i32 s[{44+2*q}:{45+2*q}], {16*(q>>3)+(q&7)}, v11' for q in range(r,r+4)))
    for j in range(8):
        L.append(f'v_cndmask_b32 v{MK+j}, 0, v12, s[{44+4*j}:{45+4*j}]\nv_cndmask_b32 v103, 0, v102, s[{46+4*j}:{47+4*j}]\nv_or_b32 v{MK+j}, v{MK+j}, v103')
    return L
def tail(e,stamp,check,var):
    S=lambda t:112+16*t
    KV=16; O=96; Q=96; OP=88
    e(f'''v_cmp_eq_u32 vcc, 0, v3
    v_mov_b32 v7, v10
    v_mov_b32 v8, v1
    s_mov_b32 s26, s86
    s_mov_b32 s27, s87
    s_mov_b32 s36, s76
    s_mov_b32 s37, s77
    v_cndmask_b32 v{Q+4}, 0, v{Q+4}, vcc
    v_cndmask_b32 v{Q+5}, 0, v{Q+5}, vcc
    s_cmp_lt_u32 s30, 4
    s_cbranch_scc1 HIPRIO
    s_setprio 1
    HIPRIO:''')
    stamp(4)
    nsk=[0]
    def wstep(j):
        def f():
            i=nsk[0]; nsk[0]+=1
            e(f's_cmp_ge_u32 s30, 4\ns_cbranch_scc1 NOWP{i}\ns_add_u32 m0, s37, {j*5120}\ns_add_u32 s38, s36, 4096')
            for t in range(4): e(f'buffer_load_dwordx4 v8, s[12:15], s36 offen offset:{t*1024} {SC} lds')
            e(f's_add_u32 m0, m0, 4096\ns_add_u32 s36, s36, 20480\nbuffer_load_dwordx4 v8, s[12:15], s38 offen {SC} lds\nNOWP{i}:')
        return f
    wp=[wstep(j) for j in range(5)]
    def flag(sreg): e(f'v_mov_b32 v12, 1\ns_mov_b64 exec, 1\nbuffer_store_dword v12, off, s[12:15], s{sreg} {SC}\ns_mov_b64 exec, -1')
    order=[8,0,1,2,3,4,5,6,7]
    def kread(i):
        t=order[i]; b=KV+6*i
        e.ds(('k',i),f'ds_read_b64 {vr(b,2)}, v5 offset:{t*256}')
        e.ds(('k',i),f'ds_read_b64 {vr(b+2,2)}, v5 offset:{t*256+PS}')
        e.ds(('k',i),f'ds_read_b64 {vr(b+4,2)}, v6 offset:{t*256}')
    M=S(0)
    def fix(t): return f's_cmp_ge_u32 s78, {8-t}\ns_cbranch_scc1 NOFIX{t}\ns_nop 7\n'+'\n'.join(f'v_mov_b32 v{S(t)+r}, 0xff800000' for r in range(16))+f'\nNOFIX{t}:'
    def mx(t):
        L=[]
        for r in range(0,16,8):
            for c in range(4):
                a,b=S(t)+r+2*c,S(t)+r+2*c+1
                L.append(f'v_max_f32 v{M+c}, v{a}, v{b}' if t==8 and r==0 else f'v_max3_f32 v{M+c}, v{a}, v{b}, v{M+c}')
        return L
    work=[[fix(0)]+[f'v_cndmask_b32 v{S(8)+r}, v{S(0)+r}, v{S(8)+r}, s[{44+2*r}:{45+2*r}]' for r in range(16)],mx(8)+[fix(1)]+mx(1)]+[[fix(t)]+mx(t) for t in range(2,8)]
    vreads=[f'ds_read_b64_tr_b16 {vr(KV+8*t+4*u+2*s,2)}, v7 offset:{t*256+u*128+s*32}' for t in (8,0,1,2,3,4,5,6,7) for u in range(2) for s in range(2)]
    e('s_lshl_b32 s78, s81, 3\ns_add_u32 s78, s78, s30')
    for i in range(4): kread(i)
    for i in range(9):
        t=order[i]; b=KV+6*i
        if i+4<9: kread(i+4)
        e.wait(ds=[('k',i)])
        w=work.pop(0) if i>=3 else []
        e(f'v_mfma_f32_32x32x16_bf16 {vr(S(t),16)}, {vr(b,4)}, {vr(Q,4)}, 0')
        e.run(w[:len(w)//2])
        e(f'v_mfma_f32_32x32x8_bf16 {vr(S(t),16)}, {vr(b+4,2)}, {vr(Q+4,2)}, {vr(S(t),16)}')
        e.run(w[len(w)//2:])
    for x in vreads[:12]: e.ds('v0',x)
    e.run(work[0]+work[1])
    vreads=vreads[12:]
    e(f'''v_max3_f32 v{M}, v{M}, v{M+1}, v{M+2}
    v_max_f32 v{M}, v{M}, v{M+3}
    v_mov_b32 v{M+1}, v{M}
    s_mov_b32 s42, 0x3ea52b5c
    s_mov_b32 s43, 0x3ea52b5c
    v_permlane32_swap_b32 v{M}, v{M+1}
    v_max_f32 v{M}, v{M}, v{M+1}
    v_mul_f32 v10, 0xbea52b5c, v{M}''')
    e.wait(vm=['pub2']); flag(84)
    stamp(5)
    pend=[]; firstm=[True]
    def pv(t,u,P):
        c='0' if firstm[0] else vr(O,16); firstm[0]=False
        return f'v_mfma_f32_32x32x16_bf16 {vr(O,16)}, {vr(KV+8*t+4*u,4)}, {vr(P+4*u,4)}, {c}'
    f2load=f'buffer_load_dword v9, v6, s[12:15], s83 offen {SC}'
    for t in [8,1,2,3,4,5,6,7]:
        b=S(t); L=[]
        for r in range(0,16,2): L.append(f'v_pk_fma_f32 {vr(b+r,2)}, {vr(b+r,2)}, s[42:43], v[10:11] op_sel_hi:[1,1,0]')
        for r in range(16): L.append(f'v_exp_f32 v{b+r}, v{b+r}')
        for j in range(8): L.append(f'v_cvt_pk_bf16_f32 v{b+j}, v{b+2*j}, v{b+2*j+1}')
        if t==8:
            for j in range(8): L.append(f'v_bfi_b32 v{S(0)+j}, v{MK+j}, 0, v{b+j}\nv_and_b32 v{b+j}, v{MK+j}, v{b+j}')
        L=weave(L,pend,start=9,step=4)
        if t in (8,1): L=weave(L,vreads[:12],start=0,step=2)+['s_waitcnt lgkmcnt(0)']; vreads=vreads[12:]; e.lq.clear()
        if wp: L.insert(4,wp.pop(0))
        if t==7: L.insert(0,lambda:(e(f's_lshl_b32 s83, s26, 8\ns_add_u32 s83, s83, {WS_F+0x2000}\nv_lshlrev_b32 v6, 2, v0'),e.vm('f2',f2load)))
        e.run(L)
        pend=[pv(t,0,b),pv(t,1,b)]
        if t==8: pend+=[pv(0,0,S(0)),pv(0,1,S(0))]
    for x in pend: e(x)
    e(f'''s_lshl_b32 s40, s81, 2
    s_add_u32 s40, s40, s31
    s_mul_i32 s40, s40, {PBS}
    s_add_u32 s40, s40, {WS_AP+OCT_O*1024}
    s_lshl_b32 s41, s32, 9
    s_add_u32 s40, s40, s41
    s_lshl_b32 s41, s80, 11
    s_add_u32 s41, s41, s40
    s_lshl_b32 s38, s80, 9
    s_add_u32 s40, s40, s38
    s_lshl_b32 s38, s32, 8
    s_sub_u32 s40, s40, s38
    s_add_u32 s40, s40, 65536
    v_lshlrev_b32 v5, 4, v2
    v_lshl_add_u32 v5, v3, 10, v5
    v_lshlrev_b32 v12, 3, v2
    v_rcp_f32 v1, v{O+12}
    v_mul_f32 v1, v1, v4''')
    for r in range(12): e(f'v_mul_f32 v{O+r}, v{O+r}, v1')
    for j in range(6): e(f'v_cvt_pk_bf16_f32 v{OP+j}, v{O+2*j}, v{O+2*j+1}')
    e.vm('pub3',f'buffer_store_dwordx4 {vr(OP,4)}, v5, s[12:15], s41 offen {SC}')
    e('s_mov_b32 exec_hi, 0')
    e.vm('pub3',f'buffer_store_dwordx2 {vr(OP+4,2)}, v12, s[12:15], s40 offen {SC}')
    e('s_mov_b32 exec_hi, -1')
    stamp(6)
    e(f'''s_cmp_lt_u32 s30, 4
    s_cbranch_scc1 FINAL
    s_waitcnt vmcnt(0)''')
    flag(85)
    e('s_endpgm\nFINAL:\ns_setprio 0')
    ACC=16; R=96; ND=4; NL=5
    acc=lambda p,t: ACC+(p*5+t)*4
    X=lambda s,p: R+36*s+4*p
    W=lambda s,t: R+36*s+16+4*t
    G=240
    e(f'''s_mul_i32 s35, s26, {PBS}
    s_lshl_b32 s38, s30, 12
    s_add_u32 s35, s35, s38
    s_add_u32 s35, s35, {WS_AP}
    v_lshlrev_b32 v11, 4, v13
    v_lshl_add_u32 v11, v14, 10, v11
    v_add_u32 v5, 4096, v8
    v_add_u32 v7, s37, v8
    s_lshl_b32 s39, s26, 8
    s_add_u32 s39, s39, {WS_G}''')
    for p in range(4):
        e(f'''s_add_u32 s{44+p}, s30, {p}
        s_and_b32 s{44+p}, s{44+p}, 3
        s_lshl_b32 s38, s{44+p}, 8
        v_add_u32 v{1+p}, s38, v11
        s_lshr_b32 s38, s38, 2
        v_lshl_add_u32 v{G+p}, v13, 2, s38''')
    e.wait(vm=['f2'])
    check(f2load,[9],1,-1)
    def loads(j):
        s=j%ND; L=[]
        for p in range(4):
            if j<16: L.append(lambda p=p:e.vm(j,f'buffer_load_dwordx4 {vr(X(s,p),4)}, v{1+p}, s[12:15], s35 offen {SC}'))
            else: L.append(lambda p=p:(e(f'v_and_b32 v12, 0x3ff, v{1+p}\nv_lshrrev_b32 v12, 1, v12\nv_lshl_add_u32 v12, v14, 10, v12'),[e.vm(j,f'buffer_load_dwordx2 {vr(X(s,p)+2*h,2)}, v12, s[12:15], s35 offen offset:{512*h} {SC}') for h in range(2)]))
        L.append('s_add_u32 s35, s35, 16384')
        if j>=NL:
            for t in range(5): L.append(lambda t=t:e.vm(j,f'buffer_load_dwordx4 {vr(W(s,t),4)}, v{8 if t<4 else 5}, s[12:15], s36 offen offset:{(t&3)*1024} {SC}'))
            L.append('s_add_u32 s36, s36, 20480')
        return L
    def wl(j): return [lambda t=t:e.ds(j,f'ds_read_b128 {vr(W(j%ND,t),4)}, v7 offset:{j*5120+t*1024}') for t in range(5)]
    for j in range(ND-1): e.run(loads(j))
    for p in range(4): e.vm('g',f'buffer_load_dword v{G+p}, v{G+p}, s[12:15], s39 offen {SC}')
    e.run(wl(0))
    f3load=f'buffer_load_dword v9, v6, s[12:15], s83 offen {SC}'
    for j in range(17):
        s=j%ND
        nxt=loads(j+ND-1) if j+ND-1<17 else []
        if j+1<NL: nxt=wl(j+1)+nxt
        if j==7: nxt.insert(0,lambda:(e(f's_add_u32 s83, s83, 0x2000'),e.vm('f3',f3load)))
        e.wait(vm=[j]+(['f3'] if j==9 else []),ds=[j])
        if j==0: flag(85); stamp(7)
        else: e.fine()
        if j==9: check(f3load,[9],1,-1)
        if j==12:
            for p in range(4): e(f'v_sub_f32 v{G+p}, 1.0, v{G+p}')
            for t in range(5):
                for p in range(4):
                    for c in range(4): e(f'v_mul_f32 v{acc(p,t)+c}, v{acc(p,t)+c}, v{G+p}')
        m=[f'v_mfma_f32_16x16x32_bf16 {vr(acc(p,t),4)}, {vr(W(s,t),4)}, {vr(X(s,p),4)}, {vr(acc(p,t),4) if j else 0}' for t in range(5) for p in range(4)]
        e.run(weave(m,nxt,start=0,step=1 if len(nxt)>11 else 2))
    stamp(8)
    for q in range(1,4): e(f's_mul_i32 s38, s{44+q}, 25600\ns_add_u32 s38, s38, {WPL+(3-q)*5120}\nv_add_u32 v{q}, s38, v8')
    for t in range(5):
        for p in range(1,4): e(f'ds_write_b128 v7, {vr(acc(p,t),4)} offset:{(p-1)*5120+t*1024}')
    e(f'''s_lshl_b32 s38, s26, 6
    s_lshl_b32 s39, s30, 4
    s_add_u32 s38, s38, s39
    s_mul_i32 s38, s38, 1280
    s_mul_i32 s39, s27, 160
    s_add_u32 s38, s38, s39
    v_mul_u32_u24 v11, 1280, v13
    v_lshl_add_u32 v11, v14, 3, v11
    s_waitcnt lgkmcnt(0)
    s_barrier''')
    for t in range(5):
        for q in range(3): e(f'ds_read_b128 {vr(R+(t*3+q)*4,4)}, v{1+q} offset:{t*1024}')
    for t in range(5):
        e(f's_waitcnt lgkmcnt({12-3*t})')
        b=R+t*12; a=acc(0,t)
        for c in range(4): e(f'v_add_f32 v{a+c}, v{a+c}, v{b+c}\nv_add_f32 v{b+4+c}, v{b+4+c}, v{b+8+c}')
        for c in range(4): e(f'v_add_f32 v{a+c}, v{a+c}, v{b+4+c}')
        e(f'v_cvt_pk_bf16_f32 v{a}, v{a}, v{a+1}\nv_cvt_pk_bf16_f32 v{a+1}, v{a+2}, v{a+3}')
        e(f'buffer_store_dwordx2 {vr(a,2)}, v11, s[8:11], s38 offen offset:{t*32}')
    stamp(9)
```

```python
from asmlib import *
import sys
WS_AP=0x800000; PBS=272*1024; OCT_O=192; WS_WP=0x1200000; WS_G=0x1500000; WS_F=0x1510000; WS_STAMP=0x1600000
PS=4128; SLOT=32768; WPL=61440
SC='sc1'
def gen(st=False,var=''):
    e=Q()
    nf=[0]
    def fine():
        if not(st and 'fine' in var): return
        if nf[0]: e(f'v_writelane_b32 v15, s90, {nf[0]-1}')
        e('s_memrealtime s[90:91]'); nf[0]+=1
    e.fine=fine
    def stamp(idx):
        if not st: return
        if 'fine' in var:
            fine()
            if idx==9:
                e(f's_waitcnt lgkmcnt(0)'); fine()
                e(f's_lshl_b32 s92, s2, 10\ns_lshl_b32 s93, s30, 8\ns_add_u32 s92, s92, s93\ns_add_u32 s92, s92, {WS_STAMP}\nv_lshlrev_b32 v1, 2, v0\nbuffer_store_dword v15, v1, s[12:15], s92 offen')
            return
        if 'dbg' in var:
            e(f's_memrealtime s[90:91]\ns_waitcnt lgkmcnt(0)'); e.lq.clear()
            if idx==0: e('s_mov_b32 s96, s58\ns_mov_b32 s97, s59\ns_mov_b32 s98, 256\ns_mov_b32 s99, 0x20000\ns_mov_b32 s89, s90\ns_lshl_b32 s92, s2, 3\ns_add_u32 s92, s92, s30\ns_cmp_eq_u32 s92, 800\ns_cselect_b32 s98, 256, 0'); return
            e(f's_sub_u32 s90, s90, s89\nv_mov_b32 v15, s90')
            e.vm('st',f'buffer_store_dword v15, off, s[96:99], 0 offset:{idx*4}')
            return
        e(f'''s_memrealtime s[90:91]
        s_memtime s[94:95]
        s_waitcnt lgkmcnt(0)
        s_lshl_b32 s92, s2, 8
        s_lshl_b32 s93, s30, 5
        s_add_u32 s92, s92, s93
        s_add_u32 s92, s92, {WS_STAMP+(idx>>2)*0x10000+(idx&3)*4}
        v_mov_b32 v15, s90''')
        e.lq.clear()
        e.vm('st',f'buffer_store_dword v15, off, s[12:15], s92')
        e('v_mov_b32 v15, s94'); e.vm('st',f'buffer_store_dword v15, off, s[12:15], s92 offset:16')
    XR=lambda ks,pt:96+ks*8+pt*4
    WR=lambda f:16+(f%8)*4
    acc=lambda pt,t:48+(t*2+pt)*4
    nspin=[0]
    def check(load,regs,expect,lanes):
        i=nspin[0]; nspin[0]+=1
        e(f's_mov_b32 s88, 0\nSPIN{i}:')
        for r in regs[1:]: e(f'v_and_b32 v{regs[0]}, v{regs[0]}, v{r}')
        e(f'''v_cmp_gt_u32 vcc, {expect}, v{regs[0]}
        s_add_u32 s88, s88, 1
        s_nop 0
        s_and_b64 vcc, vcc, {lanes}
        s_cbranch_scc0 GO{i}
        s_cmp_gt_u32 s88, 0x1000
        s_cbranch_scc1 GO{i}
        s_sleep 8
        {load}
        s_waitcnt vmcnt(0)
        s_branch SPIN{i}
        GO{i}:''')
    e(f'''s_cmp_ge_u32 s2, 256
    s_cbranch_scc1 END
    s_load_dwordx4 s[40:43], s[0:1], 0
    s_load_dwordx2 s[44:45], s[0:1], 16
    s_load_dwordx8 s[48:55], s[0:1], 32
    s_load_dwordx4 s[56:59], s[0:1], 64
    s_load_dwordx2 s[12:13], s[0:1], 80
    v_lshrrev_b32 v1, 6, v0
    v_and_b32 v0, 63, v0
    v_readfirstlane_b32 s30, v1
    s_and_b32 s24, s2, 7
    s_lshr_b32 s25, s2, 3
    s_and_b32 s26, s24, 1
    s_lshl_b32 s26, s26, 3
    s_and_b32 s27, s25, 7
    s_add_u32 s26, s26, s27      ; rb
    s_lshr_b32 s27, s24, 1
    s_lshl_b32 s27, s27, 2
    s_lshr_b32 s28, s25, 3
    s_add_u32 s27, s27, s28      ; cs
    s_lshr_b32 s31, s30, 1       ; wm
    s_and_b32 s32, s30, 1        ; wn
    s_lshr_b32 s33, s30, 2       ; half
    s_and_b32 s34, s30, 3
    v_and_b32 v13, 15, v0        ; n
    v_lshrrev_b32 v14, 4, v0     ; g
    s_lshl_b32 s35, s26, 7
    s_lshl_b32 s36, s31, 5
    s_add_u32 s35, s35, s36
    s_add_u32 s35, s35, s32
    v_lshrrev_b32 v16, 3, v0
    v_lshl_add_u32 v16, v16, 1, s35
    v_mul_u32_u24 v16, 1280, v16
    v_and_b32 v17, 7, v0
    v_xor_b32 v17, v17, v14
    v_lshl_add_u32 v1, v17, 4, v16
    v_xor_b32 v17, 4, v17
    v_lshl_add_u32 v2, v17, 4, v16
    v_add_u32 v2, 20480, v2
    s_lshl_b32 s35, s33, 5
    s_and_b32 s36, s31, 1
    s_lshl_b32 s36, s36, 2
    s_add_u32 s35, s35, s36
    s_lshl_b32 s36, s32, 4
    s_add_u32 s35, s35, s36      ; 32kk+4s+16(w&1)
    v_add_u32 v16, s35, v14
    v_mul_u32_u24 v16, 3840, v16
    s_lshl_b32 s36, s27, 8
    v_add_u32 v16, s36, v16
    v_lshlrev_b32 v17, 1, v14
    v_xor_b32 v17, v17, v13
    v_lshl_add_u32 v3, v17, 4, v16
    v_xor_b32 v17, 8, v17
    v_lshl_add_u32 v4, v17, 4, v16
    v_add_u32 v4, {8*3840}, v4
    s_lshl_b32 s60, s30, 11
    s_mul_i32 s61, s30, 3072
    s_and_b32 s35, s25, 7
    s_lshl_b32 s36, s28, 1
    s_add_u32 s35, s35, s36
    s_mul_i32 s35, s35, {0 if 'norot' in var else 5}
    s_lshr_b32 s35, s35, 2
    s_cmp_ge_u32 s35, 10
    s_cselect_b32 s36, 10, 0
    s_sub_u32 s35, s35, s36      ; k rotation
    s_lshl_b32 s62, s35, 7
    s_mul_i32 s63, s35, {64*3840}
    s_mul_i32 s64, s35, {64*3072}
    s_mov_b32 s6, {2048*1280}
    s_mov_b32 s7, 0x20000
    s_mov_b32 s10, {640*3840}
    s_cmp_eq_u32 s27, 15
    s_cselect_b32 s10, 0, s10
    s_mov_b32 s11, 0x20000
    s_mov_b32 s14, 0x10000000
    s_mov_b32 s15, 0x20000
    s_waitcnt lgkmcnt(0)
    s_mov_b32 s4, s40
    s_mov_b32 s5, s41
    s_mov_b32 s8, s42
    s_mov_b32 s9, s43''')
    def dma(s):
        b=(s%5)*SLOT; t=f'D{s}'
        if s<10:
            return [lambda:(e(f's_add_u32 m0, s60, {b}'),e.vm(t,'buffer_load_dwordx4 v1, s[4:7], s62 offen lds')),
                    lambda:(e('s_add_u32 m0, m0, 1024'),e.vm(t,'buffer_load_dwordx4 v2, s[4:7], s62 offen lds')),
                    lambda:(e(f's_add_u32 m0, m0, {16384-1024}\ns_add_u32 s62, s62, 128'),e.vm(t,'buffer_load_dwordx4 v3, s[8:11], s63 offen lds')),
                    lambda:(e('s_add_u32 m0, m0, 1024'),e.vm(t,'buffer_load_dwordx4 v4, s[8:11], s63 offen lds'),e(f's_add_u32 s63, s63, {64*3840}\ns_cmp_eq_u32 s62, 1280\ns_cselect_b32 s62, 0, s62\ns_cselect_b32 s63, 0, s63'))]
        return [lambda:(e(f's_add_u32 m0, s61, {b}'),e.vm(t,'buffer_load_dwordx4 v1, s[16:19], s64 offen lds')),
                lambda:(e('s_add_u32 m0, m0, 1024'),e.vm(t,'buffer_load_dwordx4 v2, s[16:19], s64 offen lds')),
                lambda:(e('s_add_u32 m0, m0, 1024'),e.vm(t,'buffer_load_dwordx4 v3, s[16:19], s64 offen lds'),e(f's_add_u32 s64, s64, {64*3072}\ns_cmp_eq_u32 s64, {640*3072}\ns_cselect_b32 s64, 0, s64'))]
    stamp(0)
    e.run(dma(0))
    e(f'''s_cmp_eq_u32 s33, 0
    s_cselect_b32 s16, s48, s50
    s_cselect_b32 s17, s49, s51
    s_mov_b32 s18, {640*3072}
    s_mov_b32 s19, 0x20000
    v_lshrrev_b32 v16, 1, v13
    v_xor_b32 v16, v16, v14
    v_lshlrev_b32 v16, 4, v16
    v_lshl_add_u32 v16, v13, 7, v16
    s_lshl_b32 s35, s31, 12
    v_add_u32 v5, s35, v16
    v_xor_b32 v6, 64, v5
    v_lshrrev_b32 v16, 2, v0          ; 4g+r
    v_and_b32 v17, 7, v16
    v_lshlrev_b32 v17, 5, v17
    v_lshl_add_u32 v17, v16, 8, v17
    v_and_b32 v18, 3, v0
    v_lshl_add_u32 v17, v18, 3, v17
    s_lshl_b32 s35, s32, 7
    v_xor_b32 v7, s35, v17
    v_xor_b32 v8, 32, v7
    v_xor_b32 v9, 64, v7
    v_xor_b32 v10, 0x60, v7
    s_barrier''')
    e.run(dma(1))
    e(f'''s_lshl_b32 s84, s26, 1
    s_add_u32 s84, s84, s33
    s_lshl_b32 s84, s84, 4
    s_add_u32 s84, s84, s27
    s_lshl_b32 s84, s84, 2
    s_add_u32 s84, s84, s34
    s_lshl_b32 s84, s84, 2
    s_add_u32 s84, s84, {WS_F+0x2000}     ; F2 slot
    s_and_b32 s80, s2, 31        ; head
    s_lshr_b32 s81, s2, 5        ; qb
    s_lshl_b32 s85, s81, 2
    s_add_u32 s85, s85, s31
    s_lshl_b32 s85, s85, 5
    s_add_u32 s85, s85, s80
    s_lshl_b32 s85, s85, 1
    s_add_u32 s85, s85, s32
    s_lshl_b32 s85, s85, 2
    s_add_u32 s85, s85, {WS_F+0x4000}     ; F3 slot
    s_lshl_b32 s66, s2, 2
    s_add_u32 s66, s66, {WS_F}          ; F1 slot
    v_mov_b32 v11, 0
    s_barrier''')
    e.run(dma(2))
    e('s_barrier')
    e.run(dma(3))
    e('s_mov_b64 exec, 1')
    if 'norst' not in var:
        e.vm('side',f'buffer_store_dword v11, off, s[12:15], s84 {SC}')
        e.vm('side',f'buffer_store_dword v11, off, s[12:15], s85 {SC}')
    e(f's_cmp_lg_u32 s30, 0\ns_cbranch_scc1 NORST\nbuffer_store_dword v11, off, s[12:15], s66 {SC}\nNORST:\ns_mov_b64 exec, -1')
    SP,GX,GW,T=224,232,240,248
    e(f'''s_lshl_b32 s67, s2, 3
    s_add_u32 s67, s67, s30          ; u
    s_mul_i32 s68, s67, 3277
    s_lshr_b32 s68, s68, 16          ; ks=u/20
    s_mul_i32 s69, s68, 20
    s_sub_u32 s69, s67, s69          ; np
    s_cmp_lt_u32 s68, 48
    s_cselect_b32 s20, s52, s44
    s_cselect_b32 s21, s53, s45
    s_mov_b32 s22, {640*1280}
    s_cselect_b32 s22, {1536*1280}, s22
    s_mov_b32 s23, 0x20000
    s_mul_i32 s70, s68, 32
    s_sub_u32 s71, s68, 48
    s_mul_i32 s71, s71, 40
    s_cmp_lt_u32 s68, 48
    s_cselect_b32 s70, s70, s71
    s_cselect_b32 s76, 16, 20
    s_cselect_b32 s77, 8, 4
    s_cselect_b32 s78, 4, 8
    s_sub_u32 s71, s68, 64
    s_mul_i32 s71, s71, 160
    s_add_u32 s71, s71, 16
    s_cmp_lt_u32 s68, 64
    s_cselect_b32 s70, s70, s71
    s_cselect_b32 s76, s76, 0x50
    s_cselect_b32 s77, s77, 40
    s_cselect_b32 s78, s78, 20
    s_mul_i32 s70, s70, 1280
    s_mul_i32 s78, s78, 1280
    s_lshl_b32 s71, s69, 6
    s_add_u32 s70, s70, s71
    v_lshrrev_b32 v{T}, 1, v14
    v_mul_u32_u24 v{T}, s76, v{T}
    v_and_b32 v{T+1}, 1, v14
    v_mad_u32_u24 v{T}, v{T+1}, s77, v{T}
    v_mul_u32_u24 v{T}, 1280, v{T}
    v_lshl_add_u32 v{T}, v13, 2, v{T}
    v_add_u32 v{T+1}, s78, v{T}
    s_mov_b32 s72, s54
    s_mov_b32 s73, s55
    s_mov_b32 s74, 1280
    s_mov_b32 s75, 0x20000
    s_mul_i32 s71, s67, 1280
    v_lshlrev_b32 v{T+2}, 5, v0''')
    for j in range(8 if 'nosl' not in var else 0): e.vm('side',f'buffer_load_dword v{SP+j}, v{T+(j>>2)}, s[20:23], s70 offen offset:{(j&3)*1280}')
    for j in range(2):
        e.vm('side',f'buffer_load_dwordx4 {vr(GX+4*j,4)}, v{T+2}, s[4:7], s71 offen offset:{16*j}')
        e.vm('side',f'buffer_load_dwordx4 {vr(GW+4*j,4)}, v{T+2}, s[72:75], 0 offen offset:{16*j}')
    def side_finish():
        Z=T+3; L=[]
        BP=208
        L.append(lambda:(e(f'''v_lshrrev_b32 v{T}, 1, v13
        v_lshl_add_u32 v{T}, v14, 4, v{T}
        v_lshlrev_b32 v{T}, 2, v{T}'''),[e.ds('bp',f'ds_bpermute_b32 v{BP+j}, v{T}, v{SP+j}') for j in range(8)]))
        L.append(f'v_mov_b32 v{Z}, 0\n'+'\n'.join(f'v_dot2c_f32_bf16 v{Z}, v{GX+j}, v{GW+j}' for j in range(8))+'\nv_cmp_gt_u32 vcc, 40, v0')
        L.append(lambda:[e.ds('bp',f'ds_bpermute_b32 v{BP+8+j}, v{T}, v{SP+j} offset:32') for j in range(8)])
        L.append(f'''v_cndmask_b32 v{Z}, 0, v{Z}, vcc
        s_lshl_b32 s76, s69, 1
        s_add_u32 s77, s76, 1
        v_and_b32 v{T+1}, 1, v0
        v_mul_u32_u24 v{T+1}, 0x202, v{T+1}
        v_lshl_add_u32 v{T+1}, v{T+1}, 16, v{T+1}
        v_add_u32 v{T+1}, 0x05040100, v{T+1}''')
        for r,d in ((76,'quad_perm:[1,0,3,2]'),(77,'quad_perm:[2,3,0,1]')):
            L.append(f'''v_add_f32_dpp v{Z}, v{Z}, v{Z} {d} row_mask:0xf bank_mask:0xf
            s_mul_i32 s78, s{r}, 13108
            s_lshr_b32 s78, s78, 16
            s_mul_i32 s79, s78, 5
            s_sub_u32 s79, s{r}, s79
            s_mul_i32 s78, s78, 68
            s_add_u32 s78, s78, s68
            s_mul_i32 s78, s78, 5
            s_add_u32 s78, s78, s79
            s_lshl_b32 s78, s78, 10
            s_add_u32 s78, s78, {WS_WP}
            s_cmp_ge_u32 s67, {1360 if 'noss' not in var else 0}
            s_cselect_b32 s{r-6}, 0x7ff00000, s78''')
        L.append(lambda:(e.wait(ds=['bp']),e(f'v_add_f32_dpp v{Z}, v{Z}, v{Z} row_half_mirror row_mask:0xf bank_mask:0xf\n'+'\n'.join(f'v_perm_b32 v{GX+j}, v{BP+2*j+1}, v{BP+2*j}, v{T+1}' for j in range(8))+f'''
        v_add_f32_dpp v{Z}, v{Z}, v{Z} row_mirror row_mask:0xf bank_mask:0xf
        v_lshlrev_b32 v{T}, 4, v0
        v_readlane_b32 s76, v{Z}, 16
        v_readlane_b32 s77, v{Z}, 32''')))
        L.append(lambda:(e.vm('pub1',f'buffer_store_dwordx4 {vr(GX,4)}, v{T}, s[12:15], s70 offen {SC}'),e.vm('pub1',f'buffer_store_dwordx4 {vr(GX+4,4)}, v{T}, s[12:15], s71 offen {SC}')))
        L.append(lambda:(e(f'''v_add_f32 v{Z}, s76, v{Z}
        v_add_f32 v{Z}, s77, v{Z}
        v_mul_f32 v{Z}, 0xbfb8aa3b, v{Z}
        v_exp_f32 v{Z}, v{Z}
        s_lshl_b32 s78, s67, 2
        s_add_u32 s78, s78, {WS_G if 'nog' not in var else 0x7ff00000}
        v_add_f32 v{Z}, 1.0, v{Z}
        v_rcp_f32 v{Z}, v{Z}
        s_mov_b64 exec, 1'''),e.vm('pub1',f'buffer_store_dword v{Z}, off, s[12:15], s78 {SC}'),e('s_mov_b64 exec, -1')))
        L.append(f'''s_mov_b32 s72, s58
        s_mov_b32 s73, s59
        s_mov_b32 s74, 256
        s_cmp_lg_u32 s30, 0
        s_cbranch_scc1 NOCNT
        s_and_b32 s78, s2, 3
        s_lshl_b32 s78, s78, 6
        v_mov_b32 v11, 1
        s_mov_b64 exec, 1
        buffer_atomic_add v11, off, s[72:75], s78 {SC}
        s_mov_b64 exec, -1
        NOCNT:''')
        return L
    def dmaB_addr():
        L=[f'''s_lshr_b32 s35, s34, 1
        s_lshl_b32 s35, s35, 5
        s_lshl_b32 s36, s32, 2
        s_add_u32 s35, s35, s36
        s_mul_i32 s35, s35, 3072
        s_mul_i32 s36, s27, 192
        s_add_u32 s35, s35, s36''']
        for i in range(3):
            L.append(f'''v_add_u32 v11, {64*i}, v0
            v_mul_u32_u24 v12, 5462, v11
            v_lshrrev_b32 v12, 16, v12       ; rl
            v_mul_u32_u24 v4, 12, v12
            v_sub_u32 v11, v11, v4           ; p
            v_lshrrev_b32 v4, 1, v12
            v_and_b32 v4, 2, v4
            v_xor_b32 v11, v11, v4
            v_and_b32 v4, 12, v12
            v_add_u32 v12, v12, v4           ; 8(rl>>2)+(rl&3)
            v_mul_u32_u24 v12, 3072, v12
            v_lshl_add_u32 v11, v11, 4, v12
            v_add_u32 v{1+i}, s35, v11''')
        return L
    rdB=f'''v_lshrrev_b32 v11, 2, v0
    v_mul_u32_u24 v11, 192, v11
    v_and_b32 v12, 3, v0
    v_lshl_add_u32 v11, v12, 3, v11
    v_and_b32 v12, 1, v14
    s_mul_i32 s35, s32, 3
    v_xor_b32 v7, s35, v12
    v_lshl_add_u32 v7, v7, 5, v11
    s_add_u32 s35, s35, 1
    v_xor_b32 v8, s35, v12
    v_lshl_add_u32 v8, v8, 5, v11
    s_add_u32 s35, s35, 1
    v_xor_b32 v9, s35, v12
    v_lshl_add_u32 v9, v9, 5, v11'''
    F=[]
    for s in range(20):
        for kk in range(2):
            for t in range(4 if s<10 else 6): F.append((s,kk,t))
    def reads(f):
        s,kk,t=F[f]; o=(s%5&1)*SLOT; L=[]
        if s<10:
            if t==0:
                for pt in range(2): L.append(f'ds_read_b128 {vr(XR(2*s+kk,pt),4)}, v{5+kk} offset:{o+pt*2048}')
            for h in range(2): L.append(f'ds_read_b64_tr_b16 {vr(WR(f)+2*h,2)}, v{7+t} offset:{o+16384+kk*8192+h*4096}')
        else:
            for h in range(2): L.append(f'ds_read_b64_tr_b16 {vr(WR(f)+2*h,2)}, v{7+(t>>1)} offset:{o+(t&1)*12288+kk*6144+h*3072}')
        return L
    def mf(f,pt):
        s,kk,t=F[f]; ks=(2*s+kk)%20
        a=vr(acc(pt,t),4)
        if 'nomf' in var: return 's_nop 0'
        return f'v_mfma_f32_16x16x32_bf16 {a}, {vr(WR(f),4)}, {vr(XR(ks,pt),4)}, {a if ks else 0}'
    extra=[]
    AQ=96
    def kv_loads():
        L=[f'''s_lshr_b32 s35, s34, 1
        s_add_u32 s35, s35, s81
        s_add_u32 s35, s35, 7
        s_and_b32 s35, s35, 7
        s_mul_i32 s35, s35, 480
        s_mul_i32 s82, s80, 5
        s_add_u32 s37, s33, 1
        s_mul_i32 s37, s37, 160
        s_add_u32 s35, s35, s82
        s_add_u32 s35, s35, s37
        s_lshl_b32 s35, s35, 11
        s_lshl_b32 s37, s32, 10
        s_add_u32 s35, s35, s37
        s_mul_i32 s37, s33, {5*PS}
        s_lshl_b32 s38, s34, 10
        s_add_u32 m0, s37, s38
        v_lshlrev_b32 v1, 4, v0''']
        for i in range(5): L.append(lambda:(e.vm('kv',f'buffer_load_dwordx4 v1, s[12:15], s35 offen {SC} lds'),e(f's_add_u32 m0, m0, {PS}\ns_add_u32 s35, s35, 2048')))
        L.append(f'''s_mul_i32 s38, s81, 480
        s_add_u32 s38, s38, s82
        s_lshl_b32 s38, s38, 11
        s_lshl_b32 s39, s30, 8
        s_add_u32 s38, s38, s39
        s_add_u32 s39, s38, 8192
        v_and_b32 v2, 31, v0       ; qq
        v_lshrrev_b32 v3, 5, v0    ; h
        v_lshlrev_b32 v11, 3, v2
        v_lshl_add_u32 v12, v3, 12, v11''')
        L.append(lambda:(e.vm('kv',f'buffer_load_dwordx2 {vr(AQ,2)}, v12, s[12:15], s38 offen {SC}'),e.vm('kv',f'buffer_load_dwordx2 {vr(AQ+2,2)}, v12, s[12:15], s38 offen offset:2048 {SC}')))
        L.append(lambda:(e.vm('kv',f'buffer_load_dwordx2 {vr(AQ+4,2)}, v11, s[12:15], s39 offen {SC}'),e(f'''s_lshl_b32 s38, s81, 10
        s_lshl_b32 s39, s30, 7
        s_add_u32 s38, s38, s39
        s_add_u32 s38, s38, {WS_G}
        v_lshlrev_b32 v11, 2, v2'''),e.vm('kv',f'buffer_load_dword v4, v11, s[12:15], s38 offen {SC}')))
        L.append(lambda:(e(f'''v_mov_b32 v104, 0x3f803f80
        v_mov_b32 v105, 0x3f803f80
        s_lshl_b32 s38, s30, 9
        v_lshl_add_u32 v11, v0, 3, s38'''),e.ds('ones',f'ds_write_b64 v11, v[104:105] offset:{10*PS}')))
        return L
    cntload=f'buffer_load_dword v104, v11, s[72:75], 0 offen {SC}'
    f1load=f'buffer_load_dwordx4 v[104:107], v11, s[12:15], s83 offen {SC}'
    def boundary(s):
        nonlocal extra
        e.run(extra); extra=[]
        tags=[f'D{s}']
        if s==4: tags.append('side')
        if s==13: tags.append('pub1')
        e.wait(vm=tags)
        if s in (15,18):
            e(f's_cmp_lg_u32 s30, 0\ns_cbranch_scc1 NOCHK{s}')
            if s==15: check(cntload,[104],64,15)
            else: e('s_waitcnt vmcnt(0)'); check(f1load,[104,105,106,107],1,-1)
            e(f'NOCHK{s}:')
        e('s_barrier')
        if s==0: stamp(1)
        else: fine()
        if s==10: e(rdB)
        elif s and s%5 in (0,2,4):
            d=65536 if s%5 else -131072&0xffffffff
            for r in (range(5,11) if s<10 else range(7,10)): e(f'v_add_u32 v{r}, {hex(d)}, v{r}')
        if s==7: extra+=dmaB_addr()
        if 1<=s<=16 and 'nodma' not in var: extra+=dma(s+3)
        if s==4: extra+=side_finish()
        if s==11: extra.insert(0,None)
        if s==12: extra.insert(0,f'v_lshlrev_b32 v11, 6, v0\ns_cmp_lg_u32 s30, 0\ns_cbranch_scc1 NOC\n{cntload}\nNOC:')
        if s==13:
            e(f's_cmp_lg_u32 s30, 0\ns_cbranch_scc1 NOF1\nv_mov_b32 v12, 1\ns_mov_b64 exec, 1\nbuffer_store_dword v12, off, s[12:15], s66 {SC}\ns_mov_b64 exec, -1\nNOF1:')
        if s==17: extra+=['s_nop 0']*F1D+[f'v_lshlrev_b32 v11, 4, v0\ns_mov_b32 s83, {WS_F}\ns_cmp_lg_u32 s30, 0\ns_cbranch_scc1 NOP1\n{f1load}\nNOP1:']
        if s==18:
            extra+=kv_loads()
        if s==19:
            from mega2 import setup
            extra+=setup()
        extra=[x for x in extra if x]
    LA=6; F1D=0; since=[0]
    def issue(f,between=None):
        if F[f][1]==0 and F[f][2]==0: boundary(F[f][0])
    boundary(0)
    for f in range(LA):
        for x in reads(f): e.ds(f,x)
    for f in range(len(F)):
        n=f+LA; r=[]
        if n<len(F):
            if F[n][1:]==(0,0): boundary(F[n][0]); since[0]=0
            q=2 if F[n][0]<10 else 3
            if 'noprio' not in var and since[0]%q==0: e(f's_setprio {3-since[0]//q}')
            since[0]+=1
            r=reads(n)
        e.wait(ds=[f,f+1] if 'w2' in var and f%2==0 else [f])
        e(mf(f,0))
        for x in r[:len(r)//2]: e.ds(n,x)
        e(mf(f,1))
        for x in r[len(r)//2:]: e.ds(n,x)
        if extra: e.run([extra.pop(0)])
        if f==79:
            stamp(2)
            e(f'''s_lshr_b32 s35, s26, 1
            s_mul_i32 s35, s35, 480
            s_lshl_b32 s36, s27, 5
            s_add_u32 s35, s35, s36
            s_lshl_b32 s36, s32, 4
            s_add_u32 s35, s35, s36
            s_lshl_b32 s35, s35, 11
            s_and_b32 s36, s26, 1
            s_lshl_b32 s36, s36, 10
            s_add_u32 s35, s35, s36
            s_lshl_b32 s36, s31, 8
            s_add_u32 s35, s35, s36
            s_cmp_{'eq' if 'noq' not in var else 'le'}_u32 s27, 15
            s_cselect_b32 s35, 0x7ff00000, s35
            v_lshlrev_b32 v11, 4, v13
            v_lshl_add_u32 v11, v14, 11, v11''')
            for t in range(4):
                R=80+4*t
                for pt in range(2):
                    a=acc(pt,t); e(f'v_cvt_pk_bf16_f32 v{R+2*pt}, v{a}, v{a+1}\nv_cvt_pk_bf16_f32 v{R+2*pt+1}, v{a+2}, v{a+3}')
                e.vm('pub1',f'buffer_store_dwordx4 {vr(R,4)}, v11, s[12:15], s35 offen {SC}')
                e('s_add_u32 s35, s35, 8192')
    e.run(extra)
    e.wait(vm=['kv']); e('s_waitcnt lgkmcnt(0)\ns_barrier\ns_setprio 2'); e.lq.clear()
    stamp(3)
    e(f'''s_lshl_b32 s35, s26, 1
    s_add_u32 s35, s35, s33
    s_mul_i32 s35, s35, 272
    s_mul_i32 s36, s27, 12
    s_add_u32 s35, s35, s36
    s_mul_i32 s36, s32, 6
    s_add_u32 s35, s35, s36
    s_lshl_b32 s35, s35, 10
    s_and_b32 s36, s31, 1
    s_lshl_b32 s36, s36, 9
    s_add_u32 s35, s35, s36
    s_add_u32 s35, s35, {WS_AP}
    v_lshlrev_b32 v11, 5, v13
    v_and_b32 v12, 1, v14
    v_lshl_add_u32 v11, v12, 4, v11
    v_lshrrev_b32 v12, 1, v14
    v_lshl_add_u32 v11, v12, 10, v11
    s_mov_b32 s36, 0xbfb8aa3b''')
    for T in range(3):
        g=acc(0,2*T); u=acc(0,2*T+1); t=112; R=120+4*T
        for i in range(8): e(f'v_mul_f32 v{t+i}, s36, v{g+i}')
        for i in range(8): e(f'v_exp_f32 v{t+i}, v{t+i}\nv_mul_f32 v{g+i}, v{g+i}, v{u+i}')
        for i in range(8): e(f'v_add_f32 v{t+i}, 1.0, v{t+i}')
        for i in range(8): e(f'v_rcp_f32 v{t+i}, v{t+i}')
        for i in range(8): e(f'v_mul_f32 v{t+i}, v{g+i}, v{t+i}')
        for i in range(4): e(f'v_cvt_pk_bf16_f32 v{R+i}, v{t+2*i}, v{t+2*i+1}')
        e(f'v_permlane16_swap_b32 v{R}, v{R+2}\nv_permlane16_swap_b32 v{R+1}, v{R+3}')
        e.vm('pub2',f'buffer_store_dwordx4 {vr(R,4)}, v11, s[12:15], s35 offen {SC}')
        e('s_add_u32 s35, s35, 2048')
    from mega2 import tail
    tail(e,stamp,check,var)
    e('END:\ns_endpgm')
    return ('gated_mix__sliding_block__swiglu_ffn__prompt_kernel',e.text(),256,512,163840,256)
if __name__=='__main__':
    k=gen('stamp' in sys.argv,' '.join(sys.argv[2:]))
    s=module([k])
    if 'single' in sys.argv: s=s.replace(f'; @launch kernel={k[0]} ','; @launch ')
    open(sys.argv[1],'w').write(s)
```

```python
from asmlib import *
from mega import *
MK=104
def setup():
    L=[f'''v_and_b32 v11, 19, v2
    v_and_b32 v12, 4, v2
    v_lshl_add_u32 v11, v12, 1, v11
    v_and_b32 v12, 8, v2
    v_lshrrev_b32 v12, 1, v12
    v_add_u32 v11, v12, v11       ; pi(m)''',f'''s_lshl_b32 s41, s30, 8
    v_lshl_add_u32 v11, v11, 3, s41
    v_add_u32 v8, {4*PS}, v11
    v_mul_u32_u24 v12, {2*PS}, v3
    v_add_u32 v7, v12, v11''',f'''v_and_b32 v11, 1, v14
    v_and_b32 v12, 3, v0
    v_lshl_add_u32 v11, v11, 2, v12
    v_min_u32 v11, 5, v11
    v_add_u32 v11, 5, v11
    v_mul_u32_u24 v11, {PS}, v11''',f'''v_bfe_u32 v12, v0, 2, 2
    v_lshl_add_u32 v12, v3, 3, v12
    v_lshl_add_u32 v12, v12, 3, s41
    v_add_u32 v10, v11, v12
    v_lshlrev_b32 v11, 3, v3
    v_sub_u32 v11, v2, v11      ; qq-8h''',f'''v_mov_b32 v12, 0xffff
    v_mov_b32 v102, 0xffff0000
    s_mov_b32 s8, s56
    s_mov_b32 s9, s57
    s_mov_b32 s10, {2048*1280}
    s_lshr_b32 s86, s24, 1
    s_lshl_b32 s86, s86, 3
    s_and_b32 s87, s25, 7
    s_add_u32 s86, s86, s87      ; pb
    s_and_b32 s87, s24, 1
    s_lshl_b32 s87, s87, 2
    s_add_u32 s87, s87, s28      ; nc
    s_mul_i32 s76, s87, 68
    s_add_u32 s76, s76, s34
    s_mul_i32 s76, s76, 5120
    s_add_u32 s76, s76, {WS_WP}  ; W offset
    s_mul_i32 s77, s34, 25600
    s_add_u32 s77, s77, {WPL}''']
    for r in range(0,16,4):
        L.append('\n'.join(f'v_cmp_le_i32 s[{44+2*q}:{45+2*q}], {16*(q>>3)+(q&7)}, v11' for q in range(r,r+4)))
    for j in range(8):
        L.append(f'v_cndmask_b32 v{MK+j}, 0, v12, s[{44+4*j}:{45+4*j}]\nv_cndmask_b32 v103, 0, v102, s[{46+4*j}:{47+4*j}]\nv_or_b32 v{MK+j}, v{MK+j}, v103')
    return L
S=lambda t:112+16*t
KV=16; O=96; Q=96; OP=88; ND=4; NL=5
X=lambda s,p: 112+16*s+4*p
W=lambda s,t: 176+20*s+4*t
def attn(e,stamp,check,var,A,hooks):
    sx='A' if A else 'B'
    order=[8,0,1,2,3,4,5,6,7]; M=S(0)
    def kread(i):
        t=order[i]; b=KV+6*i
        e.ds(('k',i),f'ds_read_b64 {vr(b,2)}, v7 offset:{t*256}')
        e.ds(('k',i),f'ds_read_b64 {vr(b+2,2)}, v7 offset:{t*256+PS}')
        e.ds(('k',i),f'ds_read_b64 {vr(b+4,2)}, v8 offset:{t*256}')
    def fix(t):
        e.ool.append(f'FIX{sx}{t}:\ns_nop 11\n'+'\n'.join(f'v_mov_b32 v{S(t)+r}, v9' for r in range(16))+f'\ns_branch NOFIX{sx}{t}')
        return f's_cmp_lt_u32 s78, {8-t}\ns_cbranch_scc1 FIX{sx}{t}\nNOFIX{sx}{t}:'
    def mx(t):
        L=[]
        for r in range(0,16,8):
            for c in range(4):
                a,b=S(t)+r+2*c,S(t)+r+2*c+1
                L.append(f'v_max_f32 v{M+c}, v{a}, v{b}' if t==8 and r==0 else f'v_max3_f32 v{M+c}, v{a}, v{b}, v{M+c}')
        return L
    work=[[fix(0)]+[f'v_cndmask_b32 v{S(8)+r}, v{S(0)+r}, v{S(8)+r}, s[{44+2*r}:{45+2*r}]' for r in range(16)],mx(8)+[fix(1)]+mx(1)]+[[fix(t)]+mx(t) for t in range(2,8)]
    vreads=[f'ds_read_b64_tr_b16 {vr(KV+8*t+4*u+2*s,2)}, v10 offset:{t*256+u*128+s*32}' for t in order for u in range(2) for s in range(2)]
    for i in range(4): kread(i)
    for i in range(9):
        t=order[i]; b=KV+6*i
        if i+4<9: kread(i+4)
        e.wait(ds=[('k',i)])
        w=work.pop(0) if i>=3 else []
        if i==4: e.run(hooks.get('qk',[]))
        e(f'v_mfma_f32_32x32x16_bf16 {vr(S(t),16)}, {vr(b,4)}, {vr(Q,4)}, 0')
        e.run(w[:len(w)//2])
        e(f'v_mfma_f32_32x32x8_bf16 {vr(S(t),16)}, {vr(b+4,2)}, {vr(Q+4,2)}, {vr(S(t),16)}')
        e.run(w[len(w)//2:])
    for x in vreads[:12]: e(x)
    vreads=vreads[12:]
    e.run(work[0]+work[1])
    e(f'''v_max3_f32 v{M}, v{M}, v{M+1}, v{M+2}
    v_max_f32 v{M}, v{M}, v{M+3}
    v_mov_b32 v{M+1}, v{M}
    s_mov_b32 s42, 0x3ea52b5c
    s_mov_b32 s43, 0x3ea52b5c
    v_permlane32_swap_b32 v{M}, v{M+1}
    v_max_f32 v{M}, v{M}, v{M+1}
    v_mul_f32 v8, 0xbea52b5c, v{M}''')
    e.run(hooks.get('max',[]))
    if A or 'fine' not in var: stamp(5)
    pend=[]; first=[True]
    def pv(t,u,P):
        c='0' if first[0] else vr(O,16); first[0]=False
        return f'v_mfma_f32_32x32x16_bf16 {vr(O,16)}, {vr(KV+8*t+4*u,4)}, {vr(P+4*u,4)}, {c}'
    for t in [8,1,2,3,4,5,6,7]:
        b=S(t); L=[]
        for r in range(0,16,2): L.append(f'v_pk_fma_f32 {vr(b+r,2)}, {vr(b+r,2)}, s[42:43], v[8:9] op_sel_hi:[1,1,0]')
        for r in range(16): L.append(f'v_exp_f32 v{b+r}, v{b+r}')
        for j in range(8): L.append(f'v_cvt_pk_bf16_f32 v{b+j}, v{b+2*j}, v{b+2*j+1}')
        if t==8:
            for j in range(8): L.append(f'v_bfi_b32 v{S(0)+j}, v{MK+j}, 0, v{b+j}\nv_and_b32 v{b+j}, v{MK+j}, v{b+j}')
        L=weave(L,pend,start=9,step=4)
        if t in (8,1): L=weave(L,vreads[:12],start=0,step=2)+['s_waitcnt lgkmcnt(0)']; vreads=vreads[12:]
        L=weave(L,hooks.get(t,[]),start=2,step=5)
        e.run(L)
        if A: e.fine()
        pend=[pv(t,0,b),pv(t,1,b)]
        if t==8: pend+=[pv(0,0,S(0)),pv(0,1,S(0))]
    e.run(pend)
    e(f'''v_lshlrev_b32 v8, 4, v2
    v_lshl_add_u32 v8, v3, 10, v8
    v_lshlrev_b32 v12, 3, v2''')
    e.run(hooks.get('end',[]))
    e.wait(vm=['g'])
    e(f'v_rcp_f32 v9, v{O+12}\nv_mul_f32 v9, v9, v4')
    for r in range(12): e(f'v_mul_f32 v{O+r}, v{O+r}, v9')
    for j in range(6): e(f'v_cvt_pk_bf16_f32 v{OP+j}, v{O+2*j}, v{O+2*j+1}')
    e.vm('pub3',f'buffer_store_dwordx4 {vr(OP,4)}, v8, s[12:15], s41 offen {SC}')
    e('s_mov_b32 exec_hi, 0')
    e.vm('pub3',f'buffer_store_dwordx2 {vr(OP+4,2)}, v12, s[12:15], s40 offen {SC}')
    e('s_mov_b32 exec_hi, -1')
    if A or 'fine' not in var: stamp(6)
def tail(e,stamp,check,var):
    flag=e.flag
    e(f'''v_cmp_eq_u32 vcc, 0, v3
    v_mov_b32 v9, 0xff800000
    s_mov_b32 s26, s86
    s_mov_b32 s27, s87
    s_mov_b32 s36, s76
    s_mov_b32 s37, s77
    v_cndmask_b32 v{Q+4}, 0, v{Q+4}, vcc
    v_cndmask_b32 v{Q+5}, 0, v{Q+5}, vcc
    s_mov_b32 s79, {WS_F}
    s_lshl_b32 s78, s81, 3
    s_add_u32 s78, s78, s30
    s_lshl_b32 s40, s81, 2
    s_add_u32 s40, s40, s31
    s_mul_i32 s40, s40, {PBS}
    s_add_u32 s40, s40, {WS_AP+OCT_O*1024}
    s_lshl_b32 s41, s32, 9
    s_add_u32 s40, s40, s41
    s_lshl_b32 s41, s80, 11
    s_add_u32 s41, s41, s40
    s_lshl_b32 s38, s80, 9
    s_add_u32 s40, s40, s38
    s_lshl_b32 s38, s32, 8
    s_sub_u32 s40, s40, s38
    s_add_u32 s40, s40, 65536''')
    e.wait(vm=['pub2a']); flag(84)
    stamp(4)
    e('s_cmp_lt_u32 s30, 4\ns_cbranch_scc1 ATT_A\ns_setprio 1')
    vq=list(e.vq)
    NF=0; LS=list(range(12,17))
    f1all=f'buffer_load_dwordx4 v[88:91], v1, s[12:15], s79 offen {SC}'
    def allok():
        e.wait(vm=['fa']); check(f1all,[88,89,90,91],3,-1)
        e(f's_lshl_b32 s38, s81, 10\ns_lshl_b32 s39, s30, 7\ns_add_u32 s38, s38, s39\ns_add_u32 s38, s38, {WS_G}\nv_lshlrev_b32 v88, 2, v2')
        e.vm('g',f'buffer_load_dword v4, v88, s[12:15], s38 offen {SC}')
    def wp(i):
        L=[lambda t=t:(e(f's_add_u32 m0, s37, {i*5120+t*1024}\ns_add_u32 s39, s36, {LS[i]*20480+t*1024}'),e.vm('wp',f'buffer_load_dwordx4 v1, s[12:15], s39 offen {SC} lds')) for t in range(5)]
        return L
    hb={'qk':[lambda:e.vm('fa',f1all)],'max':[allok,lambda:flag(3)]}
    if 'wpnow' in var: hb['max']+=sum([wp(i) for i in range(5)],[])
    else: hb.update({t:wp(i) for i,t in enumerate((8,1,2,3,4))})
    hb['end']=[lambda:(e.wait(vm=['wp']),e(f's_lshl_b32 s38, s34, 2\nv_mov_b32 v11, s38\nv_mov_b32 v94, 1\nds_write_b32 v11, v94 offset:{LFLAG}'))]
    attn(e,stamp,check,var,False,hb)
    e('s_waitcnt vmcnt(0)'); flag(85); e('s_endpgm\nATT_A:')
    e.vq[:]=vq; e.lq.clear()
    ACC=16; G=96; AD=[5,6,7,11]
    acc=lambda p,t: ACC+(p*5+t)*4
    fload=f'buffer_load_dword v94, v95, s[12:15], s83 offen {SC}'
    def loads(j,part='xw'):
        s=j%ND; L=[]
        for p in range(4 if 'x' in part else 0):
            if j<16: L.append(lambda p=p:e.vm(j,f'buffer_load_dwordx4 {vr(X(s,p),4)}, v{AD[p]}, s[12:15], s35 offen {SC}'))
            else: L.append(lambda p=p:(e(f'v_and_b32 v12, 0x3ff, v{AD[p]}\nv_lshrrev_b32 v12, 1, v12\nv_lshl_add_u32 v12, v14, 10, v12'),[e.vm(j,f'buffer_load_dwordx2 {vr(X(s,p)+2*h,2)}, v12, s[12:15], s35 offen offset:{512*h} {SC}') for h in range(2)]))
        if 'x' in part: L.append('s_add_u32 s35, s35, 16384')
        if j not in LS and 'w' in part:
            for t in range(5): L.append(lambda t=t:e.vm(j,f'buffer_load_dwordx4 {vr(W(s,t),4)}, v{1 if t<4 else 2}, s[12:15], s36 offen offset:{(t&3)*1024} {SC}'))
            L.append('s_add_u32 s36, s36, 20480')
        return L
    adr=[f'''s_mul_i32 s35, s26, {PBS}
    s_lshl_b32 s38, s30, 12
    s_add_u32 s35, s35, s38
    s_add_u32 s35, s35, {WS_AP}
    s_add_u32 s36, s36, {NF*20480}
    v_lshlrev_b32 v12, 4, v13
    v_lshl_add_u32 v12, v14, 10, v12''']+[f'''s_add_u32 s{44+p}, s30, {p}
    s_and_b32 s{44+p}, s{44+p}, 3
    s_lshl_b32 s38, s{44+p}, 8
    v_add_u32 v{AD[p]}, s38, v12''' for p in range(4)]
    T0=e.P('t0',4)
    hooks={8:adr,
      T0-2:[lambda:(e(f's_lshl_b32 s83, s26, 8\ns_add_u32 s83, s83, {WS_F+0x2000}\nv_lshlrev_b32 v95, 2, v0'),e.vm('f',fload),e.vm('fa',f1all))],
      T0:[lambda:(allok(),flag(3),check(fload,[94],1,-1))]+loads(0,'x'),T0+1:loads(1,'x'),T0+2:loads(2,'x'),'end':['v_add_u32 v2, 4096, v1']+loads(0,'w')+loads(1,'w')+loads(2,'w')}
    attn(e,stamp,check,var,True,hooks)
    e(f'''s_setprio 0
    s_lshl_b32 s39, s26, 8
    s_add_u32 s39, s39, {WS_G}
    v_add_u32 v3, s37, v1''')
    lfl=f'ds_read_b32 v9, v10 offset:{LFLAG}\ns_waitcnt lgkmcnt(0)'
    def wl(j): return [lambda t=t:e.ds(j,f'ds_read_b128 {vr(W(j%ND,t),4)}, v3 offset:{LS.index(j)*5120+t*1024}') for t in range(5)] if j in LS else []
    e.run(wl(0))
    e('v_lshlrev_b32 v8, 2, v0')
    for p in range(4):
        e(f'v_bfe_u32 v{G+p}, v{AD[p]}, 2, 8'); e.vm('g',f'buffer_load_dword v{G+p}, v{G+p}, s[12:15], s39 offen {SC}')
    fload=f'buffer_load_dword v9, v8, s[12:15], s83 offen {SC}'
    for j in range(17):
        s=j%ND
        nxt=loads(j+ND-1) if j+ND-1<17 else []
        nxt=wl(j+1)+nxt
        if j in (3,7): nxt.insert(0,lambda:(e('s_add_u32 s83, s83, 0x2000'),e.vm('f',fload)))
        e.wait(vm=[j]+(['f'] if j in (5,9) else [])+(['pub3'] if j==3 else []),ds=[j])
        if j==0: stamp(7)
        else: e.fine()
        if j==3: flag(85)
        if j in (5,9): check(fload,[9],1,-1)
        if j==11: e(f's_lshl_b32 s38, s30, 2\nv_mov_b32 v10, s38\n{lfl}'); check(lfl,[9],1,-1,False)
        if j==12:
            for p in range(4): e(f'v_sub_f32 v{G+p}, 1.0, v{G+p}')
            for t in range(5):
                for p in range(4):
                    for c in range(4): e(f'v_mul_f32 v{acc(p,t)+c}, v{acc(p,t)+c}, v{G+p}')
        m=[f'v_mfma_f32_16x16x32_bf16 {vr(acc(p,t),4)}, {vr(W(s,t),4)}, {vr(X(s,p),4)}, {vr(acc(p,t),4) if j else 0}' for t in range(5) for p in range(4)]
        e.run(weave(m,nxt,start=0,step=1 if len(nxt)>11 else 2))
    stamp(8)
    R=112
    for q in range(1,4): e(f's_mul_i32 s38, s{44+q}, 25600\ns_add_u32 s38, s38, {WPL+(3-q)*5120}\nv_add_u32 v{4+q}, s38, v1')
    for t in range(5):
        for p in range(1,4): e(f'ds_write_b128 v3, {vr(acc(p,t),4)} offset:{(p-1)*5120+t*1024}')
    e(f'''s_lshl_b32 s38, s26, 6
    s_lshl_b32 s39, s30, 4
    s_add_u32 s38, s38, s39
    s_mul_i32 s38, s38, 1280
    s_mul_i32 s39, s27, 160
    s_add_u32 s38, s38, s39
    v_mul_u32_u24 v11, 1280, v13
    v_lshl_add_u32 v11, v14, 3, v11
    s_waitcnt lgkmcnt(0)
    s_barrier''')
    for t in range(5):
        for q in range(3): e(f'ds_read_b128 {vr(R+(t*3+q)*4,4)}, v{5+q} offset:{t*1024}')
    for t in range(5):
        e(f's_waitcnt lgkmcnt({12-3*t})')
        b=R+t*12; a=acc(0,t)
        for c in range(4): e(f'v_add_f32 v{a+c}, v{a+c}, v{b+c}\nv_add_f32 v{b+4+c}, v{b+4+c}, v{b+8+c}')
        for c in range(4): e(f'v_add_f32 v{a+c}, v{a+c}, v{b+4+c}')
        e(f'v_cvt_pk_bf16_f32 v{a}, v{a}, v{a+1}\nv_cvt_pk_bf16_f32 v{a+1}, v{a+2}, v{a+3}')
        e(f'buffer_store_dwordx2 {vr(a,2)}, v11, s[8:11], s38 offen offset:{t*32}')
    stamp(9)
```

```python
from asmlib import *
import sys
WS_AP=0x800000; PBS=272*1024; OCT_O=192; WS_WP=0x1200000; WS_G=0x1500000; WS_F=0x1510000; WS_STAMP=0x1600000
PS=4128; LFLAG=45440; SLOT=32768; WPL=61440
SC='sc1'
def gen(st=False,var=''):
    e=Q()
    nf=[0]
    def fine():
        if not(st and 'fine' in var): return
        if nf[0]: e(f'v_writelane_b32 v15, s90, {nf[0]-1}')
        e('s_memrealtime s[90:91]'); nf[0]+=1
    e.fine=fine; e.ool=[]
    def stamp(idx):
        if not st: return
        if 'fine' in var:
            fine()
            if idx==9:
                e(f's_waitcnt lgkmcnt(0)'); fine()
                e(f's_lshl_b32 s92, s2, 10\ns_lshl_b32 s93, s30, 8\ns_add_u32 s92, s92, s93\ns_add_u32 s92, s92, {WS_STAMP}\nv_lshlrev_b32 v1, 2, v0\nbuffer_store_dword v15, v1, s[12:15], s92 offen')
            return
        if 'dbg' in var:
            e(f's_memrealtime s[90:91]\ns_waitcnt lgkmcnt(0)'); e.lq.clear()
            if idx==0: e('s_mov_b32 s96, s58\ns_mov_b32 s97, s59\ns_mov_b32 s98, 256\ns_mov_b32 s99, 0x20000\ns_mov_b32 s89, s90\ns_lshl_b32 s92, s2, 3\ns_add_u32 s92, s92, s30\ns_cmp_eq_u32 s92, 800\ns_cselect_b32 s98, 256, 0'); return
            e(f's_sub_u32 s90, s90, s89\nv_mov_b32 v15, s90')
            e.vm('st',f'buffer_store_dword v15, off, s[96:99], 0 offset:{idx*4}')
            return
        e(f'''s_memrealtime s[90:91]
        s_memtime s[94:95]
        s_waitcnt lgkmcnt(0)
        s_lshl_b32 s92, s2, 8
        s_lshl_b32 s93, s30, 5
        s_add_u32 s92, s92, s93
        s_add_u32 s92, s92, {WS_STAMP+(idx>>2)*0x10000+(idx&3)*4}
        v_mov_b32 v15, s90''')
        e.lq.clear()
        e.vm('st',f'buffer_store_dword v15, off, s[12:15], s92')
        e('v_mov_b32 v15, s94'); e.vm('st',f'buffer_store_dword v15, off, s[12:15], s92 offset:16')
    XR=lambda ks,pt:96+ks*8+pt*4
    WR=lambda f:16+(f%8)*4
    acc=lambda pt,t:48+(t*2+pt)*4
    nspin=[0]
    def check(load,regs,expect,lanes,vm=True):
        i=nspin[0]; nspin[0]+=1
        e(f's_mov_b32 s88, 0\nSPIN{i}:')
        for r in regs[1:]: e(f'v_and_b32 v{regs[0]}, v{regs[0]}, v{r}')
        e(f'''v_cmp_gt_u32 vcc, {expect}, v{regs[0]}
        s_add_u32 s88, s88, 1
        s_nop 0
        s_and_b64 vcc, vcc, {lanes}
        s_cbranch_scc0 GO{i}
        s_cmp_gt_u32 s88, 0x1000
        s_cbranch_scc1 GO{i}
        s_sleep {8 if vm else 2}
        {load}
        {'s_waitcnt vmcnt(0)' if vm else ''}
        s_branch SPIN{i}
        GO{i}:''')
    e(f'''s_cmp_ge_u32 s2, 256
    s_cbranch_scc1 END
    s_load_dwordx4 s[40:43], s[0:1], 0
    s_load_dwordx2 s[44:45], s[0:1], 16
    s_load_dwordx8 s[48:55], s[0:1], 32
    s_load_dwordx4 s[56:59], s[0:1], 64
    s_load_dwordx2 s[12:13], s[0:1], 80
    v_lshrrev_b32 v1, 6, v0
    v_and_b32 v0, 63, v0
    v_readfirstlane_b32 s30, v1
    s_and_b32 s24, s2, 7
    s_lshr_b32 s25, s2, 3
    s_and_b32 s26, s24, 1
    s_lshl_b32 s26, s26, 3
    s_and_b32 s27, s25, 7
    s_add_u32 s26, s26, s27      ; rb
    s_lshr_b32 s27, s24, 1
    s_lshl_b32 s27, s27, 2
    s_lshr_b32 s28, s25, 3
    s_add_u32 s27, s27, s28      ; cs
    s_lshr_b32 s31, s30, 1       ; wm
    s_and_b32 s32, s30, 1        ; wn
    s_lshr_b32 s33, s30, 2       ; half
    s_and_b32 s34, s30, 3
    v_and_b32 v13, 15, v0        ; n
    v_lshrrev_b32 v14, 4, v0     ; g
    s_lshl_b32 s35, s26, 7
    s_lshl_b32 s36, s31, 5
    s_add_u32 s35, s35, s36
    s_add_u32 s35, s35, s32
    v_lshrrev_b32 v16, 3, v0
    v_lshl_add_u32 v16, v16, 1, s35
    v_mul_u32_u24 v16, 1280, v16
    v_and_b32 v17, 7, v0
    v_xor_b32 v17, v17, v14
    v_lshl_add_u32 v1, v17, 4, v16
    v_xor_b32 v17, 4, v17
    v_lshl_add_u32 v2, v17, 4, v16
    v_add_u32 v2, 20480, v2
    s_lshl_b32 s35, s33, 5
    s_and_b32 s36, s31, 1
    s_lshl_b32 s36, s36, 2
    s_add_u32 s35, s35, s36
    s_lshl_b32 s36, s32, 4
    s_add_u32 s35, s35, s36      ; 32kk+4s+16(w&1)
    v_add_u32 v18, s35, v14
    v_mul_u32_u24 v16, 3840, v18
    s_lshl_b32 s36, s27, 8
    v_add_u32 v16, s36, v16
    v_lshlrev_b32 v17, 1, v14
    v_xor_b32 v17, v17, v13
    v_lshl_add_u32 v3, v17, 4, v16
    v_xor_b32 v17, 8, v17
    v_lshl_add_u32 v4, v17, 4, v16
    v_add_u32 v4, {8*3840}, v4
    s_lshl_b32 s60, s30, 11
    s_lshl_b32 s61, s30, 10
    s_and_b32 s35, s25, 7
    s_lshl_b32 s36, s28, 1
    s_add_u32 s35, s35, s36
    s_mul_i32 s35, s35, {0 if 'norot' in var else 5}
    s_lshr_b32 s35, s35, 2
    s_cmp_ge_u32 s35, 10
    s_cselect_b32 s36, 10, 0
    s_sub_u32 s35, s35, s36      ; k rotation
    s_lshl_b32 s62, s35, 7
    s_mul_i32 s63, s35, {64*3840}
    s_mul_i32 s64, s35, {64*3072}
    s_mov_b32 s6, {2048*1280}
    s_mov_b32 s7, 0x20000
    s_mov_b32 s10, {640*3840}
    s_mov_b32 s65, {64*3840}
    s_mov_b32 s11, 0x20000
    s_mov_b32 s14, 0x10000000
    s_mov_b32 s15, 0x20000
    s_waitcnt lgkmcnt(0)
    s_mov_b32 s4, s40
    s_mov_b32 s5, s41
    s_mov_b32 s8, s42
    s_mov_b32 s9, s43
    s_cmp_lg_u32 s27, 15
    s_cbranch_scc1 NOTG
    s_mov_b32 s8, s54
    s_mov_b32 s9, s55
    s_mov_b32 s10, 1280
    s_mov_b32 s63, s62
    s_mov_b32 s65, 128
    v_and_b32 v19, 1, v14
    v_and_b32 v18, 0xfe, v18
    v_lshlrev_b32 v18, 1, v18
    v_add_u32 v20, 16, v18
    v_mov_b32 v21, 0x7ff00000
    v_cmp_eq_u32 vcc, v17, v19
    v_cndmask_b32 v4, v21, v20, vcc
    v_xor_b32 v17, 8, v17
    v_cmp_eq_u32 vcc, v17, v19
    v_cndmask_b32 v3, v21, v18, vcc
    NOTG:''')
    LB=lambda s:(s%5)*SLOT if s<15 else 49152+(s-15)*16384
    def dma(s):
        b=(s%5)*SLOT; t=f'D{s}'
        if s<10:
            return [lambda:(e(f's_add_u32 m0, s60, {b}'),e.vm(t,'buffer_load_dwordx4 v1, s[4:7], s62 offen lds')),
                    lambda:(e('s_add_u32 m0, m0, 1024'),e.vm(t,'buffer_load_dwordx4 v2, s[4:7], s62 offen lds')),
                    lambda:(e(f's_add_u32 m0, m0, {16384-1024}\ns_add_u32 s62, s62, 128'),e.vm(t,'buffer_load_dwordx4 v3, s[8:11], s63 offen lds')),
                    lambda:(e('s_add_u32 m0, m0, 1024'),e.vm(t,'buffer_load_dwordx4 v4, s[8:11], s63 offen lds'),e(f's_add_u32 s63, s63, s65\ns_cmp_eq_u32 s62, 1280\ns_cselect_b32 s62, 0, s62\ns_cselect_b32 s63, 0, s63'))]
        wrap=lambda r:f's_add_u32 s{r}, s{r}, {64*3072}\ns_cmp_eq_u32 s{r}, {640*3072}\ns_cselect_b32 s{r}, 0, s{r}'
        b=LB(s); L=[]
        for hh in range(2):
            if s<15:
                L.append(lambda hh=hh:(e(f's_add_u32 m0, s60, {b+hh*16384}'),e.vm(t,'buffer_load_dwordx4 v1, s[16:19], s64 offen lds')))
                L.append(lambda:(e('s_add_u32 m0, m0, 1024'),e.vm(t,'buffer_load_dwordx4 v2, s[16:19], s64 offen lds'),e(wrap(64))))
            else:
                L.append(lambda hh=hh:(e(f's_add_u32 m0, s61, {b+hh*8192}'),e.vm(t,'buffer_load_dwordx4 v3, s[16:19], s64 offen lds'),e(wrap(64))))
        return L
    stamp(0)
    e.run(dma(0))
    if 'tlb' in var:
        e('''s_cmp_lg_u32 s30, 7
        s_cbranch_scc1 NOTLB
        v_lshlrev_b32 v16, 19, v0
        v_min_u32 v16, 0x1580000, v16
        v_add_u32 v16, 0x7ff80, v16
        buffer_load_dword v17, v16, s[12:15], 0 offen
        s_mov_b32 s18, 0x200000
        s_mov_b32 s19, 0x20000
        v_lshlrev_b32 v16, 16, v0''')
        for p,n in ((48,640*3072),(50,640*3072),(52,1536*1280),(44,640*1280),(56,2048*1280)):
            e(f's_mov_b32 s16, s{p}\ns_mov_b32 s17, s{p+1}\ns_mov_b32 s18, {n}\nbuffer_load_dword v17, v16, s[16:19], 0 offen')
        e('NOTLB:')
    e(f'''s_cmp_eq_u32 s33, 0
    s_cselect_b32 s16, s48, s50
    s_cselect_b32 s17, s49, s51
    s_mov_b32 s18, {640*3072}
    s_mov_b32 s19, 0x20000
    v_lshrrev_b32 v16, 1, v13
    v_xor_b32 v16, v16, v14
    v_lshlrev_b32 v16, 4, v16
    v_lshl_add_u32 v16, v13, 7, v16
    s_lshl_b32 s35, s31, 12
    v_add_u32 v5, s35, v16
    v_xor_b32 v6, 64, v5
    v_lshrrev_b32 v16, 2, v0          ; 4g+r
    v_and_b32 v17, 7, v16
    v_lshlrev_b32 v17, 5, v17
    v_lshl_add_u32 v17, v16, 8, v17
    v_and_b32 v18, 3, v0
    v_lshl_add_u32 v17, v18, 3, v17
    s_lshl_b32 s35, s32, 7
    v_xor_b32 v7, s35, v17
    v_xor_b32 v8, 32, v7
    v_xor_b32 v9, 64, v7
    v_xor_b32 v10, 0x60, v7
    s_barrier''')
    e.run(dma(1))
    SP,GX,GW,T,BP=224,232,240,248,80
    e(f'''s_lshl_b32 s66, s26, 4
    s_add_u32 s66, s66, s27
    s_lshl_b32 s66, s66, 2
    s_add_u32 s66, s66, {WS_F}          ; F1 slot
    s_lshl_b32 s84, s26, 1
    s_add_u32 s84, s84, s33
    s_lshl_b32 s84, s84, 4
    s_add_u32 s84, s84, s27
    s_lshl_b32 s84, s84, 2
    s_add_u32 s84, s84, s34
    s_lshl_b32 s84, s84, 2
    s_add_u32 s84, s84, {WS_F+0x2000}     ; F2a slot
    s_add_u32 s3, s84, 0x2000            ; F2b slot
    s_and_b32 s80, s2, 31        ; head
    s_lshr_b32 s81, s2, 5        ; qb
    s_lshl_b32 s85, s81, 2
    s_add_u32 s85, s85, s31
    s_lshl_b32 s85, s85, 5
    s_add_u32 s85, s85, s80
    s_lshl_b32 s85, s85, 1
    s_add_u32 s85, s85, s32
    s_lshl_b32 s85, s85, 2
    s_add_u32 s85, s85, {WS_F+0x6000}     ; F3 slot
    s_lshl_b32 s67, s30, 8
    s_add_u32 s67, s67, s2
    s_mul_i32 s68, s67, 3277
    s_lshr_b32 s68, s68, 16          ; ks=u/20
    s_mul_i32 s69, s68, 20
    s_sub_u32 s69, s67, s69          ; np
    s_lshr_b32 s35, s68, 1
    s_and_b32 s36, s35, 1
    s_mul_i32 s35, s35, 3
    s_add_u32 s35, s35, s36
    s_and_b32 s36, s68, 1
    s_add_u32 s35, s35, s36          ; B1 row/32
    s_sub_u32 s37, s68, 32
    s_mul_i32 s37, s37, 3
    s_lshl_b32 s36, s36, 1
    s_sub_u32 s37, s37, s36
    s_add_u32 s37, s37, 2            ; B2 row/32
    s_cmp_lt_u32 s68, 32
    s_cselect_b32 s70, s35, s37
    s_lshl_b32 s70, s70, 5
    s_sub_u32 s71, s68, 48
    s_mul_i32 s71, s71, 40
    s_cmp_lt_u32 s68, 48
    s_cselect_b32 s20, s52, s44
    s_cselect_b32 s21, s53, s45
    s_mov_b32 s22, {640*1280}
    s_cselect_b32 s22, {1536*1280}, s22
    s_mov_b32 s23, 0x20000
    s_cselect_b32 s70, s70, s71
    s_cselect_b32 s76, 16, 20
    s_cselect_b32 s77, 8, 4
    s_cselect_b32 s78, 4, 8
    s_sub_u32 s71, s68, 64
    s_mul_i32 s71, s71, 160
    s_add_u32 s71, s71, 16
    s_cmp_lt_u32 s68, 64
    s_cselect_b32 s70, s70, s71
    s_cselect_b32 s76, s76, 0x50
    s_cselect_b32 s77, s77, 40
    s_cselect_b32 s78, s78, 20
    s_mul_i32 s70, s70, 1280
    s_mul_i32 s78, s78, 1280
    s_lshl_b32 s71, s69, 6
    s_add_u32 s70, s70, s71
    s_lshl_b32 s79, s26, 2
    s_add_u32 s79, s79, s31
    s_lshl_b32 s79, s79, 7
    s_add_u32 s79, s79, {WS_G}
    s_mov_b32 s54, s76
    s_mov_b32 s55, s77
    s_mov_b32 s48, s58
    s_mov_b32 s49, s59
    s_mov_b32 s50, 256
    s_mov_b32 s51, 0x20000
    s_lshl_b32 s76, s69, 1
    s_add_u32 s77, s76, 1''')
    for r in (76,77):
        e(f'''s_mul_i32 s35, s{r}, 13108
        s_lshr_b32 s35, s35, 16
        s_mul_i32 s36, s35, 5
        s_sub_u32 s36, s{r}, s36
        s_mul_i32 s35, s35, 68
        s_add_u32 s35, s35, s68
        s_mul_i32 s35, s35, 5
        s_add_u32 s35, s35, s36
        s_lshl_b32 s35, s35, 10
        s_add_u32 s35, s35, {WS_WP}
        s_cmp_ge_u32 s67, 1360
        s_cselect_b32 s{r}, 0x7ff00000, s35''')
    e(f'''s_lshr_b32 s35, s26, 1
    s_mul_i32 s35, s35, 480
    s_lshl_b32 s36, s27, 5
    s_add_u32 s35, s35, s36
    s_lshl_b32 s36, s32, 4
    s_add_u32 s35, s35, s36
    s_lshl_b32 s35, s35, 11
    s_and_b32 s36, s26, 1
    s_lshl_b32 s36, s36, 10
    s_add_u32 s35, s35, s36
    s_lshl_b32 s36, s31, 8
    s_add_u32 s35, s35, s36
    s_cmp_eq_u32 s27, 15
    s_cselect_b32 s46, 0x7ff00000, s35
    s_lshl_b32 s35, s26, 1
    s_add_u32 s35, s35, s33
    s_mul_i32 s35, s35, {PBS}
    s_and_b32 s36, s31, 1
    s_lshl_b32 s36, s36, 9
    s_add_u32 s35, s35, s36
    s_add_u32 s35, s35, {WS_AP}
    s_lshl_b32 s36, s27, 1
    s_add_u32 s36, s36, s32
    s_lshl_b32 s37, s36, 12
    s_add_u32 s47, s35, s37
    s_lshl_b32 s37, s36, 11
    s_add_u32 s29, s35, s37
    s_add_u32 s29, s29, {128*1024}''')
    def resets():
        e('''v_mov_b32 v11, 0
        v_mov_b32 v12, s84
        v_writelane_b32 v12, s3, 1
        v_writelane_b32 v12, s85, 2
        v_writelane_b32 v12, s66, 3
        s_cmp_eq_u32 s30, 0
        s_cselect_b64 exec, 15, 7''')
        e.vm('rst',f'buffer_store_dword v11, v12, s[12:15], 0 offen {SC}')
        e('s_mov_b64 exec, -1')
    GX,GW,Z,Z2=80,88,11,12
    def g_loads():
        return [lambda j=j:(e('v_lshlrev_b32 v10, 4, v0'),e.vm('gl',f'buffer_load_dwordx4 {vr(GX+4*j,4)}, v10, s[4:7], s71 offen offset:{1024*j}'),e.vm('gl',f'buffer_load_dwordx4 {vr(GW+4*j,4)}, v10, s[72:75], 0 offen offset:{1024*j}')) for j in range(2)]
    def g_finish():
        dpp=lambda d:f'v_add_f32_dpp v{Z}, v{Z}, v{Z} {d} row_mask:0xf bank_mask:0xf'
        L=[lambda:(e.wait(vm=['gl']),e(f'v_mov_b32 v{Z}, 0\nv_mov_b32 v{Z2}, 0\nv_cmp_gt_u32 vcc, 16, v0'))]
        L+=[f'v_dot2c_f32_bf16 v{Z}, v{GX+j}, v{GW+j}\nv_dot2c_f32_bf16 v{Z2}, v{GX+4+j}, v{GW+4+j}' for j in range(4)]
        L+=[f'v_cndmask_b32 v{Z2}, 0, v{Z2}, vcc\nv_add_f32 v{Z}, v{Z}, v{Z2}',dpp('quad_perm:[1,0,3,2]'),dpp('quad_perm:[2,3,0,1]'),dpp('row_half_mirror'),dpp('row_mirror'),
            f'v_readlane_b32 s35, v{Z}, 16\nv_readlane_b32 s36, v{Z}, 32\nv_readlane_b32 s37, v{Z}, 48',
            f'v_add_f32 v{Z}, s35, v{Z}\nv_add_f32 v{Z}, s36, v{Z}\nv_add_f32 v{Z}, s37, v{Z}\nv_mul_f32 v{Z}, 0xbfb8aa3b, v{Z}\nv_exp_f32 v{Z}, v{Z}',
            f'v_add_f32 v{Z}, 1.0, v{Z}\nv_rcp_f32 v{Z}, v{Z}',
            lambda:(e('s_mov_b64 exec, 1'),e.vm('pub1b',f'buffer_store_dword v{Z}, off, s[12:15], s79 {SC}'),e('s_mov_b64 exec, -1'))]
        return L
    def pack_dma():
        return [f'''v_lshrrev_b32 v11, 1, v14
        v_mul_u32_u24 v11, s54, v11
        v_and_b32 v12, 1, v14
        v_mad_u32_u24 v11, v12, s55, v11
        v_bfe_u32 v2, v0, 2, 2
        v_add_u32 v11, v11, v2''',f'''v_mul_u32_u24 v11, 1280, v11
        v_lshlrev_b32 v12, 1, v12
        v_and_b32 v2, 3, v0
        v_xor_b32 v12, v12, v2
        v_lshl_add_u32 v11, v12, 4, v11''',
        lambda:(e('s_mov_b32 m0, s60'),e.vm('pk','buffer_load_dwordx4 v11, s[20:23], s70 offen lds')),'',
        lambda:(e('s_add_u32 m0, m0, 1024\ns_add_u32 s70, s70, s78'),e.vm('pk','buffer_load_dwordx4 v11, s[20:23], s70 offen lds'))]
    def pack_finish():
        L=[lambda:(e.wait(vm=['pk']),e('''s_lshl_b32 s35, s32, 5
        s_sub_u32 s36, s60, 49152
        v_xor_b32 v11, s35, v9
        v_add_u32 v11, s36, v11
        v_xor_b32 v12, 32, v11
        v_lshlrev_b32 v5, 4, v0'''))]
        for u in range(2): L.append(lambda u=u:[e.ds(('pk',u),f'ds_read_b64_tr_b16 {vr(80+4*u+2*h,2)}, v{11+u} offset:{h*1024}') for h in range(2)])
        L+=['']*2
        for u in range(2): L.append(lambda u=u:(e.wait(ds=[('pk',u)]),e.vm('pub1b',f'buffer_store_dwordx4 {vr(80+4*u,4)}, v5, s[12:15], s{76+u} offen {SC}')))
        return L
    def dmaB_addr():
        return [f'''s_lshr_b32 s35, s34, 1
        s_lshl_b32 s35, s35, 5
        s_lshl_b32 s36, s32, 2
        s_add_u32 s35, s35, s36
        s_mul_i32 s35, s35, 3072
        s_mul_i32 s36, s27, 192
        s_add_u32 s35, s35, s36
        s_and_b32 s36, s27, 1
        s_lshl_b32 s37, s36, 6
        s_add_u32 s37, s37, s35          ; B1
        s_lshl_b32 s36, s36, 7
        s_sub_u32 s35, s35, s36
        s_add_u32 s35, s35, 128          ; B2
        v_lshrrev_b32 v11, 3, v0
        v_and_b32 v12, 4, v11
        v_add_u32 v11, v11, v12          ; 8(rl>>2)+(rl&3)
        v_mul_u32_u24 v11, 3072, v11
        v_and_b32 v12, 7, v0
        v_lshlrev_b32 v4, 1, v14
        v_xor_b32 v12, v12, v4
        v_lshl_add_u32 v11, v12, 4, v11
        v_add_u32 v1, s37, v11
        v_add_u32 v2, {16*3072}, v1''',f'''v_lshrrev_b32 v11, 2, v0
        v_and_b32 v12, 12, v11
        v_add_u32 v11, v11, v12
        v_mul_u32_u24 v11, 3072, v11
        v_and_b32 v12, 3, v0
        v_and_b32 v4, 2, v4
        v_xor_b32 v12, v12, v4
        v_lshl_add_u32 v11, v12, 4, v11
        v_add_u32 v3, s35, v11''']
    rdB=f'''v_lshrrev_b32 v11, 2, v0
    v_and_b32 v12, 3, v0
    v_lshlrev_b32 v12, 3, v12
    v_lshl_add_u32 v9, v11, 6, v12
    v_lshl_add_u32 v12, v11, 7, v12
    v_bfe_u32 v11, v0, 3, 2
    s_lshl_b32 s35, s32, 1
    v_xor_b32 v11, s35, v11
    v_lshl_add_u32 v7, v11, 5, v12
    v_xor_b32 v8, 32, v7'''
    rdB2=f'''v_and_b32 v11, 1, v14
    v_xor_b32 v11, s32, v11
    v_lshl_add_u32 v9, v11, 5, v9
    v_add_u32 v9, 49152, v9
    v_lshlrev_b32 v5, 4, v13
    v_lshl_add_u32 v5, v14, 11, v5
    v_lshlrev_b32 v6, 5, v13
    v_and_b32 v12, 1, v14
    v_lshl_add_u32 v6, v12, 4, v6
    v_lshrrev_b32 v12, 1, v14
    v_lshl_add_u32 v6, v12, 10, v6'''
    F=[]
    for s in range(20):
        for kk in range(2 if s<10 else 4):
            for t in range(4 if s<15 else 2): F.append((s,kk,t))
    def reads(f):
        s,kk,t=F[f]; o=(s%5&1)*SLOT; L=[]
        for h in range(2):
            d=vr(WR(f)+2*h,2)
            if s<10: L.append(f'ds_read_b64_tr_b16 {d}, v{7+t} offset:{o+16384+kk*8192+h*4096}')
            elif s<15: L.append(f'ds_read_b64_tr_b16 {d}, v{7+(t>>1)} offset:{o+(kk>>1)*16384+(t&1)*8192+(kk&1)*4096+h*2048}')
            else: L.append(f'ds_read_b64_tr_b16 {d}, v9 offset:{((s-15)&3)*16384+(kk>>1)*8192+t*4096+(kk&1)*2048+h*1024}')
        if s<10 and t==0: L=[f'ds_read_b128 {vr(XR(2*s+kk,pt),4)}, v{5+kk} offset:{o+pt*2048}' for pt in range(2)]+L
        return L
    def mf(f,pt):
        s,kk,t=F[f]; ks=2*s+kk if s<10 else 4*(s%5)+kk
        a=vr(acc(pt,t+(4 if s>=15 else 0)),4)
        return f'v_mfma_f32_16x16x32_bf16 {a}, {vr(WR(f),4)}, {vr(XR(ks,pt),4)}, {a if ks else 0}'
    def silu(T,tag,sreg,off):
        g=acc(0,2*T); u=acc(0,2*T+1); L=[]
        for i in range(8): L.append(f'v_mul_f32 v{u+i}, v{g+i}, v{u+i}\nv_mul_f32 v{g+i}, 0xbfb8aa3b, v{g+i}')
        for i in range(8): L.append(f'v_exp_f32 v{g+i}, v{g+i}')
        for i in range(8): L.append(f'v_add_f32 v{g+i}, 1.0, v{g+i}')
        for i in range(8): L.append(f'v_rcp_f32 v{g+i}, v{g+i}')
        for i in range(8): L.append(f'v_mul_f32 v{g+i}, v{g+i}, v{u+i}')
        for i in range(4): L.append(f'v_cvt_pk_bf16_f32 v{u+i}, v{g+2*i}, v{g+2*i+1}')
        L=['\n'.join(L[i:i+4]) for i in range(0,len(L),4)]
        L.append(lambda:(e(f'v_permlane16_swap_b32 v{u}, v{u+2}\nv_permlane16_swap_b32 v{u+1}, v{u+3}'),e.vm(tag,f'buffer_store_dwordx4 {vr(u,4)}, v6, s[12:15], s{sreg} offen offset:{off} {SC}')))
        return L
    extra=[]
    AQ=96
    def kv_loads():
        L=[f'''s_lshr_b32 s35, s34, 1
        s_add_u32 s35, s35, s81
        s_add_u32 s35, s35, 7
        s_and_b32 s35, s35, 7
        s_mul_i32 s35, s35, 480
        s_mul_i32 s82, s80, 5
        s_add_u32 s37, s33, 1
        s_mul_i32 s37, s37, 160
        s_add_u32 s35, s35, s82
        s_add_u32 s35, s35, s37
        s_lshl_b32 s35, s35, 11
        s_lshl_b32 s37, s32, 10
        s_add_u32 s35, s35, s37
        s_mul_i32 s37, s33, {5*PS}
        s_lshl_b32 s38, s34, 10
        s_add_u32 s52, s37, s38
        s_mov_b32 s53, s35
        v_lshlrev_b32 v1, 4, v0''']
        for i in range(5): L.append(lambda i=i:(e(f's_add_u32 m0, s52, {i*PS}'),e.vm('kv',f'buffer_load_dwordx4 v1, s[12:15], s53 offen {SC} lds'),e('s_add_u32 s53, s53, 2048')))
        L.append(f'''s_mul_i32 s38, s81, 480
        s_add_u32 s38, s38, s82
        s_lshl_b32 s38, s38, 11
        s_lshl_b32 s39, s30, 8
        s_add_u32 s38, s38, s39
        s_add_u32 s39, s38, 8192
        v_and_b32 v2, 31, v0       ; qq
        v_lshrrev_b32 v3, 5, v0    ; h
        v_lshlrev_b32 v11, 3, v2
        v_lshl_add_u32 v12, v3, 12, v11''')
        L.append(lambda:(e.vm('kv',f'buffer_load_dwordx2 {vr(AQ,2)}, v12, s[12:15], s38 offen {SC}'),e.vm('kv',f'buffer_load_dwordx2 {vr(AQ+2,2)}, v12, s[12:15], s38 offen offset:2048 {SC}')))
        L.append(lambda:e.vm('kv',f'buffer_load_dwordx2 {vr(AQ+4,2)}, v11, s[12:15], s39 offen {SC}'))
        L.append(lambda:(e(f'''v_mov_b32 v104, 0x3f803f80
        v_mov_b32 v105, 0x3f803f80
        s_lshl_b32 s38, s30, 9
        v_lshl_add_u32 v11, v0, 3, s38'''),e.ds('ones',f'ds_write_b64 v11, v[104:105] offset:{10*PS}'),e('v_mov_b32 v103, 0\nv_lshlrev_b32 v11, 2, v0'),e.ds('ones',f'ds_write_b32 v11, v103 offset:{LFLAG}')))
        return L
    cntload=f'buffer_load_dword v4, v10, s[48:51], 0 offen {SC}'
    f1sub=f'buffer_load_dword v4, v10, s[12:15], s83 offen {SC}'
    f1all=f'buffer_load_dwordx4 v[112:115], v1, s[12:15], s83 offen {SC}'
    w0=lambda tag,body:f's_cmp_lg_u32 s30, 0\ns_cbranch_scc1 {tag}\n{body}\n{tag}:'
    fstore=lambda sreg,val,r:f'v_mov_b32 v{r}, {val}\ns_mov_b64 exec, 1\nbuffer_store_dword v{r}, off, s[12:15], s{sreg} {SC}\ns_mov_b64 exec, -1'
    e.flag=lambda sreg:e(fstore(sreg,1,12))
    slow=[]
    P=lambda k,d:int(var.split(k+'=')[1].split('_')[0].split()[0]) if k+'=' in var else d
    e.P=P
    PUB1=P('p1',13); KVB=P('kv',15); PUB1B=P('p1b',17)
    kv=kv_loads()
    def boundary(s):
        nonlocal extra,slow
        e.run(extra); extra=[]
        if s in (14,15): e.run(slow); slow=[]
        tags=[f'D{s}']
        if s==5: tags.append('rst')
        if s==PUB1: tags.append('pub1')
        if s==PUB1B: tags.append('pub1b')
        e.wait(vm=tags)
        if s in (13,KVB):
            tg='cnt' if s==13 else 'f1'
            n=len(e.vq)-1-e.vq.index(tg) if tg in e.vq else 63
            e(f's_cmp_lg_u32 s30, 0\ns_cbranch_scc1 NOCHK{s}\ns_waitcnt vmcnt({len([x for x in e.vq[::-1][:n] if x not in e.mark])})')
            if s==13: check(cntload,[4],64,15)
            else: check(f1sub,[4],1,-1)
            e(f'NOCHK{s}:')
        e('s_barrier')
        if s==0: stamp(1)
        else: fine()
        if s==10: e(rdB); extra.append(rdB2)
        elif s==19: e('v_add_u32 v9, 0x10000, v9')
        elif 0<s<15 and s%5 in (0,2,4):
            d=65536 if s%5 else -131072&0xffffffff
            for r in (range(5,11) if s<10 else (7,8)): e(f'v_add_u32 v{r}, {hex(d)}, v{r}')
        if s==PUB1: e(w0('NOF1',fstore(66,1,12)))
        if s==PUB1B: e(w0('NOF1B',fstore(66,3,4)))
        if s==7: extra+=dmaB_addr()
        if s==KVB-1: extra+=['']*P('fd',8 if s<15 else 2)+[lambda:(e(f'''s_lshl_b32 s35, s81, 5
            s_sub_u32 s35, s35, 32
            v_add_u32 v10, s35, v0
            v_and_b32 v10, 0xff, v10
            v_lshlrev_b32 v10, 2, v10
            s_mov_b32 s83, {WS_F}
            '''+w0('NOP1',f1sub)),e.vq.append('f1'))]
        for d in {0:[2,3],12:[],13:[15],14:[16,17],15:[18,19]}.get(s,[s+3] if s<12 else []): extra=dma(d)+extra if s==KVB-1 and d%2==0 else extra+dma(d)
        if s==1: extra.append(resets)
        if s==5: extra.append('s_and_b32 s35, s2, 3\ns_lshl_b32 s35, s35, 6\n'+w0('NOCNT',f'v_mov_b32 v11, 1\ns_mov_b64 exec, 1\nbuffer_atomic_add v11, off, s[48:51], s35 {SC}\ns_mov_b64 exec, -1'))
        if s==12: extra+=[lambda:(e('v_lshlrev_b32 v10, 6, v0\n'+w0('NOC',cntload)),e.vq.append('cnt'))]+pack_dma()
        if s==P('ps',14): slow+=['']*P('pd',0)+pack_finish()
        if s==KVB: extra+=kv[:3]
        if s==KVB+1: extra+=[kv[3],'','',kv[4],'','',kv[5]]
        if s==17: extra+=kv[6:]
        if s==18:
            from mega2 import setup
            slow+=setup()
    LA=6
    boundary(0)
    for f in range(LA):
        for x in reads(f): e.ds(f,x)
        if extra: e.run([extra.pop(0)])
    for f in range(len(F)):
        n=f+LA; r=[]
        if n<len(F):
            if F[n][1:]==(0,0): boundary(F[n][0])
            r=reads(n)
        e.wait(ds=[f])
        e(mf(f,0))
        for x in r[:len(r)//2]: e.ds(n,x)
        if slow: e.run([slow.pop(0)])
        e(mf(f,1))
        for x in r[len(r)//2:]: e.ds(n,x)
        if extra: e.run([extra.pop(0)])
        if f==79:
            stamp(2)
            e('s_lshl_b32 s35, s27, 1\ns_add_u32 s35, s35, s32\ns_cmp_eq_u32 s35, 30\ns_cbranch_scc1 GATE\nGATED:')
            e.ool.append(f'''GATE:
            s_nop 7
            v_permlane32_swap_b32 v49, v50
            v_permlane32_swap_b32 v53, v54
            v_add_f32 v48, v48, v50
            v_add_f32 v49, v52, v54
            v_mul_f32 v48, 0xbfb8aa3b, v48
            v_mul_f32 v49, 0xbfb8aa3b, v49
            v_exp_f32 v48, v48
            v_exp_f32 v49, v49
            v_lshlrev_b32 v50, 3, v0
            v_add_f32 v48, 1.0, v48
            v_add_f32 v49, 1.0, v49
            v_rcp_f32 v48, v48
            v_rcp_f32 v49, v49
            s_mov_b64 exec, 0xffff
            buffer_store_dwordx2 v[48:49], v50, s[12:15], s79 offen {SC}
            s_mov_b64 exec, -1
            s_branch GATED''')
            for t in range(4):
                R=80+4*t
                for pt in range(2):
                    a=acc(pt,t); e(f'v_cvt_pk_bf16_f32 v{R+2*pt}, v{a}, v{a+1}\nv_cvt_pk_bf16_f32 v{R+2*pt+1}, v{a+2}, v{a+3}')
                slow+=[lambda R=R:(e.vm('pub1',f'buffer_store_dwordx4 {vr(R,4)}, v5, s[12:15], s46 offen {SC}'),e('s_add_u32 s46, s46, 8192'))]+['']*(P('qs',6)-1)
        if f==160: slow+=silu(0,'pub2a',47,0)+silu(1,'pub2a',47,2048)
    e.run(extra); e.run(slow)
    e.wait(vm=['kv'])
    e('s_waitcnt lgkmcnt(0)\ns_barrier\ns_setprio 2'); e.lq.clear()
    stamp(3)
    e.run(silu(2,'pub2b',29,0))
    from mega2 import tail
    tail(e,stamp,check,var)
    e('END:\ns_endpgm')
    for x in e.ool: e(x)
    return ('gated_mix__sliding_block__swiglu_ffn__prompt_kernel',e.text(),256,512,163840,256)
if __name__=='__main__':
    k=gen('stamp' in sys.argv,' '.join(sys.argv[2:]))
    s=module([k])
    if 'single' in sys.argv: s=s.replace(f'; @launch kernel={k[0]} ','; @launch ')
    open(sys.argv[1],'w').write(s)
```

```python
import re
TRANS=('v_exp_f32','v_log_f32','v_rcp_f32','v_rsq_f32','v_sqrt_f32')
def regs(tok,kind):
    tok=tok.strip().lstrip('-')
    tok=tok.replace('abs(','').replace(')','').replace('|','')
    m=re.fullmatch(kind+r'(\d+)',tok)
    if m: return {int(m.group(1))}
    m=re.fullmatch(kind+r'\[(\d+):(\d+)\]',tok)
    if m: return set(range(int(m.group(1)),int(m.group(2))+1))
    if kind=='s' and tok in('vcc','vcc_lo','vcc_hi'): return {106,107}
    return set()
def parse(line):
    l=line.split(';')[0].strip()
    if not l or l.endswith(':') or l.startswith('.'): return None
    p=l.split(None,1); op=p[0]
    ops=[]
    if len(p)>1:
        for o in p[1].split(','):
            ops.append(o.strip().split(' ')[0])
    d=dict(op=op,vr=set(),vw=set(),sr=set(),sw=set(),cls='other',C=set(),AB=set(),m0w=False,n=1,dpp=('quad_perm' in l or 'row_' in l))
    V=lambda o:regs(o,'v'); S=lambda o:regs(o,'s')
    if op=='s_nop': d['n']=int(ops[0])+1
    elif op.startswith('v_mfma'):
        d['cls']='mfma'; d['vw']=V(ops[0]); d['AB']=V(ops[1])|V(ops[2]); d['C']=V(ops[3]); d['vr']=d['AB']|d['C']
        d['passes']=8 if '32x32' in op else 4
    elif op.startswith('v_'):
        d['cls']='valu'
        if op.startswith('v_cmp'):
            d['sw']=S(ops[0]); src=ops[1:]
        elif op.startswith(('v_readfirstlane','v_readlane')):
            d['sw']=S(ops[0]); src=ops[1:]
        elif op.startswith(('v_permlane','v_swap')):
            d['vw']=V(ops[0])|V(ops[1]); src=ops
        else:
            d['vw']=V(ops[0]); src=ops[1:]
            if op.startswith(('v_fmac','v_dot2c')): src=ops
        for o in src: d['vr']|=V(o); d['sr']|=S(o)
    elif op.startswith('buffer_') or op.startswith('global_'):
        d['cls']='vmem'
        d['lds']=' lds' in l
        if op.startswith('buffer_load') and not d['lds']:
            d['vw']=V(ops[0]); src=ops[1:]
        else: src=ops
        for o in src: d['vr']|=V(o); d['sr']|=S(o)
        if op.startswith('buffer_store') and ('x4' in op or 'x3' in op): d['wide']=V(ops[0])
    elif op.startswith('ds_'):
        d['cls']='ds'
        if op.startswith(('ds_read','ds_bperm')): d['vw']=V(ops[0]); src=ops[1:]
        else: src=ops
        for o in src: d['vr']|=V(o)
    elif op.startswith('s_'):
        d['cls']='salu'
        if ops and ops[0]=='m0': d['m0w']=True
        for o in ops[1:]: d['sr']|=S(o)
        if op.startswith('s_cmp'): d['sr']|=S(ops[0])
    return d
def need(p,c):
    n=0
    if p['cls']=='valu':
        if c['cls']=='mfma' and p['vw']&c['vr']: n=max(n,2)
        if c['cls']=='valu':
            if p['op'].startswith(TRANS) and p['vw']&c['vr']: n=max(n,1)
            if (c['op'].startswith('v_permlane') or c['dpp']) and p['vw']&c['vr']: n=max(n,2)
            if c['op'].startswith(('v_readfirstlane','v_readlane')) and p['vw']&c['vr']: n=max(n,1)
            if p['sw']&c['sr']: n=max(n,2)
            if p['op'].startswith('v_dot2') and p['op']!=c['op'] and p['vw']&(c['vr']|c['vw']): n=max(n,3)
        if c['cls']=='vmem' and p['sw']&c['sr']: n=max(n,5)
        if c['cls']=='salu' and p['sw']&c['sr']: n=max(n,2)
    if p['cls']=='mfma':
        big=p['passes']==8
        if c['cls']=='mfma':
            if p['vw']&c['AB']: n=max(n,12 if big else 8)
            if p['vw']&c['C'] and (p['vw']!=c['C'] or p['passes']!=c['passes']): n=max(n,10 if big else 6)
            if p['vw']&c['vw'] and not (p['vw']&c['C']): n=max(n,12 if big else 8)
        elif c['cls'] in('valu','vmem','ds'):
            if p['vw']&(c['vr']|c['vw']): n=max(n,12 if big else 8)
            if c['cls']=='valu' and p['C']&c['vw']: n=max(n,7 if big else 3)
    if p.get('wide') and p['wide']&c['vw']: n=max(n,2)
    if p['m0w'] and c['cls']=='vmem' and c.get('lds'): n=max(n,1)
    return n
def pad(lines):
    out=[]; hs=[[]]; saved={}
    def push(c):
        for h in hs:
            h.append(c); del h[:-24]
    for line in lines:
        c=parse(line)
        if c is None:
            out.append(line)
            l=line.strip()
            if l.endswith(':') and l[:-1] in saved: hs+=saved.pop(l[:-1])
            continue
        req=0
        for h in hs:
            dist=0
            for p in reversed(h):
                if dist>=20: break
                req=max(req,need(p,c)-dist); dist+=p['n']
        if req>0:
            out.append(f'    s_nop {req-1}'); push(parse(f's_nop {req-1}'))
        out.append(line); push(c)
        u=[]
        for h in hs:
            if not any(len(h)==len(x) and all(i is j for i,j in zip(h,x)) for x in u): u.append(h)
        hs[:]=u
        if c['op'].startswith(('s_cbranch','s_branch')):
            saved.setdefault(line.split()[1],[]).extend([list(h) for h in hs])
    return out
class E:
    def __init__(s): s.l=[]
    def __call__(s,t):
        for x in t.strip('\n').split('\n'):
            x=x.strip()
            if x: s.l.append(x if x.endswith(':') else '    '+x)
    def text(s): return '\n'.join(pad(s.l))+'\n'
def vr(a,n): return f'v{a}' if n==1 else f'v[{a}:{a+n-1}]'
def weave(main,fill,start=0,step=1):
    out=[]; f=list(fill);
    for i,m in enumerate(main):
        out.append(m)
        if i>=start and (i-start)%step==0 and f: out.append(f.pop(0))
    out+=f
    return out
def desc(name,vgpr,sgpr=102):
    acc=(vgpr+3)//4*4
    return f""".p2align 6
.amdhsa_kernel {name}
  .amdhsa_next_free_vgpr {vgpr}
  .amdhsa_next_free_sgpr {sgpr}
  .amdhsa_accum_offset {acc}
  .amdhsa_group_segment_fixed_size 0
  .amdhsa_kernarg_size 88
  .amdhsa_user_sgpr_count 2
  .amdhsa_user_sgpr_kernarg_segment_ptr 1
  .amdhsa_system_sgpr_workgroup_id_x 1
.end_amdhsa_kernel
"""
def module(kernels):
    hdr=open('gated_mix__sliding_block__swiglu_ffn__prompt.s.ref').read().split('; Override')[0]
    s=hdr+''.join(f'; @launch kernel={k[0]} grid=({k[2]},1,1) block=({k[3]},1,1) lds={k[4]}\n' for k in kernels)
    s+='.amdgcn_target "amdgcn-amd-amdhsa--gfx950"\n.text\n'
    seen=[]
    for k in kernels:
        if k[0] in seen: continue
        seen.append(k[0])
        s+=f'.globl {k[0]}\n.p2align 8\n.type {k[0]},@function\n{k[0]}:\n{k[1]}'
    s+='.section .rodata,"a"\n'
    seen=[]
    for k in kernels:
        if k[0] in seen: continue
        seen.append(k[0]); s+=desc(k[0],k[5])
    return s
class Q(E):
    def __init__(s): super().__init__(); s.vq=[]; s.lq=[]; s.mark=('cnt','f1')
    def vm(s,tag,t): s(t); s.vq.append(tag)
    def ds(s,tag,t): s(t); s.lq.append(tag)
    def _n(s,q,tags):
        idx=[i for i,x in enumerate(q) if x in tags]
        if not idx: return None
        del q[:idx[-1]+1]; return len([x for x in q if x not in s.mark])
    def wait(s,vm=(),ds=()):
        a=s._n(s.vq,vm); b=s._n(s.lq,ds); p=[]
        if a is not None: p.append(f'vmcnt({min(a,63)})')
        if b is not None: p.append(f'lgkmcnt({min(b,15)})')
        if p: s('s_waitcnt '+' '.join(p))
    def run(s,items):
        for it in items:
            if callable(it): it()
            else: s(it)

import subprocess
def sizes(lines):
    open('_sz.s','w').write('.amdgcn_target "amdgcn-amd-amdhsa--gfx950"\n.text\n'+'\n'.join(lines)+'\n')
    subprocess.run(['clang','-x','assembler','-target','amdgcn-amd-amdhsa','-mcpu=gfx950','-c','_sz.s','-o','_sz.o'],check=True)
    o=subprocess.run(['llvm-objdump','-d','_sz.o'],capture_output=True,text=True).stdout
    return [4*len(l.split('//')[1].split(':')[1].split('<')[0].split()) for l in o.split('\n') if '//' in l]
def paginate(text,nstub,first=3072,unit=4096):
    L=text.rstrip('\n').split('\n')
    sz=iter(sizes(L+[f'PG{i}:' for i in range(nstub)]))
    out=[];room=first;k=0;al=unit.bit_length()-1
    for l in L:
        if parse(l) is None: out.append(l); continue
        n=next(sz)
        if room-n<4 and k<nstub:
            out+=[f'    s_branch PN{k}',f'.p2align {al}',f'PG{k}:','    s_branch WARMED',f'PN{k}:']; k+=1; room=unit-4
        out.append(l); room-=n
    out+=[f'PG{i}:\n    s_branch WARMED' for i in range(k,nstub)]
    return '\n'.join(out)+'\n'
```

```python
from asmlib import *
from mega import *
MK=104
def setup():
    L=[f'''v_and_b32 v11, 19, v2
    v_and_b32 v12, 4, v2
    v_lshl_add_u32 v11, v12, 1, v11
    v_and_b32 v12, 8, v2
    v_lshrrev_b32 v12, 1, v12
    v_add_u32 v11, v12, v11       ; pi(m)''',f'''s_lshl_b32 s41, s30, 8
    v_lshl_add_u32 v11, v11, 3, s41
    v_add_u32 v8, {4*PS}, v11
    v_mul_u32_u24 v12, {2*PS}, v3
    v_add_u32 v7, v12, v11''',f'''v_and_b32 v11, 1, v14
    v_and_b32 v12, 3, v0
    v_lshl_add_u32 v11, v11, 2, v12
    v_min_u32 v11, 5, v11
    v_add_u32 v11, 5, v11
    v_mul_u32_u24 v11, {PS}, v11''',f'''v_bfe_u32 v12, v0, 2, 2
    v_lshl_add_u32 v12, v3, 3, v12
    v_lshl_add_u32 v12, v12, 3, s41
    v_add_u32 v10, v11, v12
    v_lshlrev_b32 v11, 3, v3
    v_sub_u32 v11, v2, v11      ; qq-8h''',f'''v_mov_b32 v12, 0xffff
    v_mov_b32 v102, 0xffff0000
    s_mov_b32 s8, s56
    s_mov_b32 s9, s57
    s_mov_b32 s10, {2048*1280}
    s_lshr_b32 s86, s24, 1
    s_lshl_b32 s86, s86, 3
    s_and_b32 s87, s25, 7
    s_add_u32 s86, s86, s87      ; pb
    s_and_b32 s87, s24, 1
    s_lshl_b32 s87, s87, 2
    s_add_u32 s87, s87, s28      ; nc
    s_mul_i32 s76, s87, 68
    s_add_u32 s76, s76, s34
    s_mul_i32 s76, s76, 5120
    s_add_u32 s76, s76, {WS_WP}  ; W offset
    s_mul_i32 s77, s34, 25600
    s_add_u32 s77, s77, {WPL}''']
    for r in range(0,16,4):
        L.append('\n'.join(f'v_cmp_le_i32 s[{44+2*q}:{45+2*q}], {16*(q>>3)+(q&7)}, v11' for q in range(r,r+4)))
    for j in range(8):
        L.append(f'v_cndmask_b32 v{MK+j}, 0, v12, s[{44+4*j}:{45+4*j}]\nv_cndmask_b32 v103, 0, v102, s[{46+4*j}:{47+4*j}]\nv_or_b32 v{MK+j}, v{MK+j}, v103')
    return L
S=lambda t:112+16*t
KV=16; O=96; Q=96; OP=88; ND=4; NL=5
X=lambda s,p: 112+16*s+4*p
W=lambda s,t: 176+20*s+4*t
def attn(e,stamp,check,var,A,hooks):
    sx='A' if A else 'B'
    order=[8,0,1,2,3,4,5,6,7]; M=S(0)
    def kread(i):
        t=order[i]; b=KV+6*i
        e.ds(('k',i),f'ds_read_b64 {vr(b,2)}, v7 offset:{t*256}')
        e.ds(('k',i),f'ds_read_b64 {vr(b+2,2)}, v7 offset:{t*256+PS}')
        e.ds(('k',i),f'ds_read_b64 {vr(b+4,2)}, v8 offset:{t*256}')
    def fix(t):
        e.ool.append(f'FIX{sx}{t}:\ns_nop 11\n'+'\n'.join(f'v_mov_b32 v{S(t)+r}, v9' for r in range(16))+f'\ns_branch NOFIX{sx}{t}')
        return f's_cmp_lt_u32 s78, {8-t}\ns_cbranch_scc1 FIX{sx}{t}\nNOFIX{sx}{t}:'
    def mx(t):
        L=[]
        for r in range(0,16,8):
            for c in range(4):
                a,b=S(t)+r+2*c,S(t)+r+2*c+1
                L.append(f'v_max_f32 v{M+c}, v{a}, v{b}' if t==8 and r==0 else f'v_max3_f32 v{M+c}, v{a}, v{b}, v{M+c}')
        return L
    work=[[fix(0)]+[f'v_cndmask_b32 v{S(8)+r}, v{S(0)+r}, v{S(8)+r}, s[{44+2*r}:{45+2*r}]' for r in range(16)],mx(8)+[fix(1)]+mx(1)]+[[fix(t)]+mx(t) for t in range(2,8)]
    vreads=[f'ds_read_b64_tr_b16 {vr(KV+8*t+4*u+2*s,2)}, v10 offset:{t*256+u*128+s*32}' for t in order for u in range(2) for s in range(2)]
    for i in range(4): kread(i)
    for i in range(9):
        t=order[i]; b=KV+6*i
        if i+4<9: kread(i+4)
        e.wait(ds=[('k',i)])
        w=work.pop(0) if i>=3 else []
        if i==4: e.run(hooks.get('qk',[]))
        e(f'v_mfma_f32_32x32x16_bf16 {vr(S(t),16)}, {vr(b,4)}, {vr(Q,4)}, 0')
        e.run(w[:len(w)//2])
        e(f'v_mfma_f32_32x32x8_bf16 {vr(S(t),16)}, {vr(b+4,2)}, {vr(Q+4,2)}, {vr(S(t),16)}')
        e.run(w[len(w)//2:])
    for x in vreads[:12]: e(x)
    vreads=vreads[12:]
    e.run(work[0]+work[1])
    e(f'''v_max3_f32 v{M}, v{M}, v{M+1}, v{M+2}
    v_max_f32 v{M}, v{M}, v{M+3}
    v_mov_b32 v{M+1}, v{M}
    s_mov_b32 s42, 0x3ea52b5c
    s_mov_b32 s43, 0x3ea52b5c
    v_permlane32_swap_b32 v{M}, v{M+1}
    v_max_f32 v{M}, v{M}, v{M+1}
    v_mul_f32 v8, 0xbea52b5c, v{M}''')
    e.run(hooks.get('max',[]))
    if A or 'fine' not in var: stamp(5)
    pend=[]; first=[True]
    def pv(t,u,P):
        c='0' if first[0] else vr(O,16); first[0]=False
        return f'v_mfma_f32_32x32x16_bf16 {vr(O,16)}, {vr(KV+8*t+4*u,4)}, {vr(P+4*u,4)}, {c}'
    for t in [8,1,2,3,4,5,6,7]:
        b=S(t); L=[]
        for r in range(0,16,2): L.append(f'v_pk_fma_f32 {vr(b+r,2)}, {vr(b+r,2)}, s[42:43], v[8:9] op_sel_hi:[1,1,0]')
        for r in range(16): L.append(f'v_exp_f32 v{b+r}, v{b+r}')
        for j in range(8): L.append(f'v_cvt_pk_bf16_f32 v{b+j}, v{b+2*j}, v{b+2*j+1}')
        if t==8:
            for j in range(8): L.append(f'v_bfi_b32 v{S(0)+j}, v{MK+j}, 0, v{b+j}\nv_and_b32 v{b+j}, v{MK+j}, v{b+j}')
        L=weave(L,pend,start=9,step=4)
        if t in (8,1): L=weave(L,vreads[:12],start=0,step=2)+['s_waitcnt lgkmcnt(0)']; vreads=vreads[12:]
        L=weave(L,hooks.get(t,[]),start=2,step=5)
        e.run(L)
        if A: e.fine()
        pend=[pv(t,0,b),pv(t,1,b)]
        if t==8: pend+=[pv(0,0,S(0)),pv(0,1,S(0))]
    e.run(pend)
    e(f'''v_lshlrev_b32 v8, 4, v2
    v_lshl_add_u32 v8, v3, 10, v8
    v_lshlrev_b32 v12, 3, v2''')
    e.run(hooks.get('end',[]))
    e.wait(vm=['g'])
    e(f'v_rcp_f32 v9, v{O+12}\nv_mul_f32 v9, v9, v4')
    for r in range(12): e(f'v_mul_f32 v{O+r}, v{O+r}, v9')
    for j in range(6): e(f'v_cvt_pk_bf16_f32 v{OP+j}, v{O+2*j}, v{O+2*j+1}')
    e.vm('pub3',f'buffer_store_dwordx4 {vr(OP,4)}, v8, s[12:15], s41 offen {SC}')
    e('s_mov_b32 exec_hi, 0')
    e.vm('pub3',f'buffer_store_dwordx2 {vr(OP+4,2)}, v12, s[12:15], s40 offen {SC}')
    e('s_mov_b32 exec_hi, -1')
    if A or 'fine' not in var: stamp(6)
def tail(e,stamp,check,var):
    flag=e.flag
    e(f'''v_cmp_eq_u32 vcc, 0, v3
    v_mov_b32 v9, 0xff800000
    s_mov_b32 s26, s86
    s_mov_b32 s27, s87
    s_mov_b32 s36, s76
    s_mov_b32 s37, s77
    v_cndmask_b32 v{Q+4}, 0, v{Q+4}, vcc
    v_cndmask_b32 v{Q+5}, 0, v{Q+5}, vcc
    s_mov_b32 s79, {WS_F}
    s_lshl_b32 s78, s81, 3
    s_add_u32 s78, s78, s30
    s_lshl_b32 s40, s81, 2
    s_add_u32 s40, s40, s31
    s_mul_i32 s40, s40, {PBS}
    s_add_u32 s40, s40, {WS_AP+OCT_O*1024}
    s_lshl_b32 s41, s32, 9
    s_add_u32 s40, s40, s41
    s_lshl_b32 s41, s80, 11
    s_add_u32 s41, s41, s40
    s_lshl_b32 s38, s80, 9
    s_add_u32 s40, s40, s38
    s_lshl_b32 s38, s32, 8
    s_sub_u32 s40, s40, s38
    s_add_u32 s40, s40, 65536''')
    pa=lambda:(e.wait(vm=['pub2a']),flag(84))
    if 'hs' not in var: pa()
    stamp(4)
    e('s_cmp_lt_u32 s30, 4\ns_cbranch_scc1 ATT_A\ns_setprio 1')
    vq=list(e.vq)
    NF=0; LS=list(range(12,17))
    f1all=f'buffer_load_dwordx4 v[88:91], v1, s[12:15], s79 offen {SC}'
    def allok():
        e.wait(vm=['fa']); check(f1all,[88,89,90,91],3,-1)
        e(f's_lshl_b32 s38, s81, 10\ns_lshl_b32 s39, s30, 7\ns_add_u32 s38, s38, s39\ns_add_u32 s38, s38, {WS_G}\nv_lshlrev_b32 v88, 2, v2')
        e.vm('g',f'buffer_load_dword v4, v88, s[12:15], s38 offen {SC}')
    def wp(i):
        L=[lambda t=t:(e(f's_add_u32 m0, s37, {i*5120+t*1024}\ns_add_u32 s39, s36, {LS[i]*20480+t*1024}'),e.vm('wp',f'buffer_load_dwordx4 v1, s[12:15], s39 offen {SC} lds')) for t in range(5)]
        return L
    hb={'qk':([pa] if 'hs' in var else [])+[lambda:e.vm('fa',f1all)],'max':[allok,lambda:flag(3)]}
    if 'wpnow' in var: hb['max']+=sum([wp(i) for i in range(5)],[])
    else: hb.update({t:wp(i) for i,t in enumerate((8,1,2,3,4))})
    hb['end']=[lambda:(e.wait(vm=['wp']),e(f's_lshl_b32 s38, s34, 2\nv_mov_b32 v11, s38\nv_mov_b32 v94, 1\nds_write_b32 v11, v94 offset:{LFLAG}'))]
    attn(e,stamp,check,var,False,hb)
    e('s_waitcnt vmcnt(0)'); flag(85); e('s_endpgm\nATT_A:')
    e.vq[:]=vq; e.lq.clear()
    ACC=16; G=96; AD=[5,6,7,11]
    acc=lambda p,t: ACC+(p*5+t)*4
    fload=f'buffer_load_dword v94, v95, s[12:15], s83 offen {SC}'
    def loads(j,part='xw'):
        s=j%ND; L=[]
        rj=(lambda st:f's_add_u32 s38, s48, {j}\ns_and_b32 s38, s38, 7\ns_mul_i32 s38, s38, {st}') if j<8 else (lambda st:f's_mov_b32 s38, {j*st}')
        if 'x' in part: L.append(rj(16384)+'\ns_add_u32 s49, s35, s38')
        for p in range(4 if 'x' in part else 0):
            if j<16: L.append(lambda p=p:e.vm(j,f'buffer_load_dwordx4 {vr(X(s,p),4)}, v{AD[p]}, s[12:15], s49 offen {SC}'))
            else: L.append(lambda p=p:(e(f'v_and_b32 v12, 0x3ff, v{AD[p]}\nv_lshrrev_b32 v12, 1, v12\nv_lshl_add_u32 v12, v14, 10, v12'),[e.vm(j,f'buffer_load_dwordx2 {vr(X(s,p)+2*h,2)}, v12, s[12:15], s49 offen offset:{512*h} {SC}') for h in range(2)]))
        if j not in LS and 'w' in part:
            L.append(rj(20480)+'\ns_add_u32 s50, s36, s38')
            for t in range(5): L.append(lambda t=t:e.vm(j,f'buffer_load_dwordx4 {vr(W(s,t),4)}, v{1 if t<4 else 2}, s[12:15], s50 offen offset:{(t&3)*1024} {SC}'))
        return L
    adr=[f'''s_mul_i32 s35, s26, {PBS}
    s_lshl_b32 s38, s30, 12
    s_add_u32 s35, s35, s38
    s_add_u32 s35, s35, {WS_AP}
    s_lshl_b32 s48, s28, 1
    s_add_u32 s48, s48, s25
    s_and_b32 s48, s48, {7 if 'frot' in var else 0}
    v_lshlrev_b32 v12, 4, v13
    v_lshl_add_u32 v12, v14, 10, v12''']+[f'''s_add_u32 s{44+p}, s30, {p}
    s_and_b32 s{44+p}, s{44+p}, 3
    s_lshl_b32 s38, s{44+p}, 8
    v_add_u32 v{AD[p]}, s38, v12''' for p in range(4)]
    T0=e.P('t0',4)
    hooks={8:adr,'max':[pa] if 'hs' in var else [],
      T0-2:[lambda:(e(f's_lshl_b32 s83, s26, 8\ns_add_u32 s83, s83, {WS_F+0x2000}\nv_lshlrev_b32 v95, 2, v0'),e.vm('f',fload),e.vm('fa',f1all))],
      T0:[lambda:(allok(),flag(3),check(fload,[94],1,-1))]+loads(0,'x'),T0+1:loads(1,'x'),T0+2:loads(2,'x'),'end':['v_add_u32 v2, 4096, v1']+loads(0,'w')+loads(1,'w')+loads(2,'w')}
    attn(e,stamp,check,var,True,hooks)
    e(f'''s_setprio 0
    s_lshl_b32 s39, s26, 8
    s_add_u32 s39, s39, {WS_G}
    v_add_u32 v3, s37, v1''')
    lfl=f'ds_read_b32 v9, v10 offset:{LFLAG}\ns_waitcnt lgkmcnt(0)'
    def wl(j): return [lambda t=t:e.ds(j,f'ds_read_b128 {vr(W(j%ND,t),4)}, v3 offset:{LS.index(j)*5120+t*1024}') for t in range(5)] if j in LS else []
    e.run(wl(0))
    e('v_lshlrev_b32 v8, 2, v0')
    for p in range(4):
        e(f'v_bfe_u32 v{G+p}, v{AD[p]}, 2, 8'); e.vm('g',f'buffer_load_dword v{G+p}, v{G+p}, s[12:15], s39 offen {SC}')
    fload=f'buffer_load_dword v9, v8, s[12:15], s83 offen {SC}'
    for j in range(17):
        s=j%ND
        nxt=loads(j+ND-1) if j+ND-1<17 else []
        nxt=wl(j+1)+nxt
        if j in (3,7): nxt.insert(0,lambda:(e('s_add_u32 s83, s83, 0x2000'),e.vm('f',fload)))
        e.wait(vm=[j]+(['f'] if j in (5,9) else [])+(['pub3'] if j==3 else []),ds=[j])
        if j==0: stamp(7)
        else: e.fine()
        if j==3: flag(85)
        if j in (5,9): check(fload,[9],1,-1)
        if j==11: e(f's_lshl_b32 s38, s30, 2\nv_mov_b32 v10, s38\n{lfl}'); check(lfl,[9],1,-1,False)
        if j==12:
            for p in range(4): e(f'v_sub_f32 v{G+p}, 1.0, v{G+p}')
            for t in range(5):
                for p in range(4):
                    for c in (0,2): e(f'v_pk_mul_f32 {vr(acc(p,t)+c,2)}, {vr(acc(p,t)+c,2)}, {vr(G+(p&2),2)} op_sel:[0,{p&1}] op_sel_hi:[1,{p&1}]')
        m=[f'v_mfma_f32_16x16x32_bf16 {vr(acc(p,t),4)}, {vr(W(s,t),4)}, {vr(X(s,p),4)}, {vr(acc(p,t),4) if j else 0}' for t in range(5) for p in range(4)]
        if j==16:
            o=[(p,t) for p in (1,2,3,0) for t in range(5)]
            m=[m[t*4+p] for p,t in o]
            e.run(weave(m,[f'ds_write_b128 v3, {vr(acc(p,t),4)} offset:{(p-1)*5120+t*1024}' for p,t in o[:15]],start=5))
        else: e.run(weave(m,nxt,start=0,step=1 if len(nxt)>11 else 2))
    stamp(8)
    R=112
    for q in range(1,4): e(f's_mul_i32 s38, s{44+q}, 25600\ns_add_u32 s38, s38, {WPL+(3-q)*5120}\nv_add_u32 v{4+q}, s38, v1')
    e(f'''s_lshl_b32 s38, s26, 6
    s_lshl_b32 s39, s30, 4
    s_add_u32 s38, s38, s39
    s_mul_i32 s38, s38, 1280
    s_mul_i32 s39, s27, 160
    s_add_u32 s38, s38, s39
    v_mul_u32_u24 v11, 1280, v13
    v_lshl_add_u32 v11, v14, 3, v11
    s_waitcnt lgkmcnt(0)
    s_barrier''')
    for t in range(5):
        for q in range(3): e(f'ds_read_b128 {vr(R+(t*3+q)*4,4)}, v{5+q} offset:{t*1024}')
    for t in range(5):
        e(f's_waitcnt lgkmcnt({12-3*t})')
        b=R+t*12; a=acc(0,t)
        for c in range(4): e(f'v_add_f32 v{a+c}, v{a+c}, v{b+c}\nv_add_f32 v{b+4+c}, v{b+4+c}, v{b+8+c}')
        for c in range(4): e(f'v_add_f32 v{a+c}, v{a+c}, v{b+4+c}')
        e(f'v_cvt_pk_bf16_f32 v{a}, v{a}, v{a+1}\nv_cvt_pk_bf16_f32 v{a+1}, v{a+2}, v{a+3}')
        e(f'buffer_store_dwordx2 {vr(a,2)}, v11, s[8:11], s38 offen offset:{t*32}')
    stamp(9)
```

```python
from asmlib import *
import sys
WS_AP=0x800000; PBS=272*1024; OCT_O=192; WS_WP=0x1200000; WS_G=0x1500000; WS_F=0x1510000; WS_STAMP=0x1600000
PS=4128; LFLAG=45440; SLOT=32768; WPL=61440
SC='sc1'
def gen(st=False,var=''):
    e=Q()
    nf=[0]
    def fine():
        if not(st and 'fine' in var): return
        if nf[0]: e(f'v_writelane_b32 v15, s90, {nf[0]-1}')
        e('s_memrealtime s[90:91]'); nf[0]+=1
    e.fine=fine; e.ool=[]
    def stamp(idx):
        if not st: return
        if 'fine' in var:
            fine()
            if idx==9:
                e(f's_waitcnt lgkmcnt(0)'); fine()
                e(f's_lshl_b32 s92, s2, 10\ns_lshl_b32 s93, s30, 8\ns_add_u32 s92, s92, s93\ns_add_u32 s92, s92, {WS_STAMP}\nv_lshlrev_b32 v1, 2, v0\nbuffer_store_dword v15, v1, s[12:15], s92 offen')
            return
        if 'dbg' in var:
            e(f's_memrealtime s[90:91]\ns_waitcnt lgkmcnt(0)'); e.lq.clear()
            if idx==0: e('s_mov_b32 s96, s58\ns_mov_b32 s97, s59\ns_mov_b32 s98, 256\ns_mov_b32 s99, 0x20000\ns_mov_b32 s89, s90\ns_lshl_b32 s92, s2, 3\ns_add_u32 s92, s92, s30\ns_cmp_eq_u32 s92, 800\ns_cselect_b32 s98, 256, 0'); return
            e(f's_sub_u32 s90, s90, s89\nv_mov_b32 v15, s90')
            e.vm('st',f'buffer_store_dword v15, off, s[96:99], 0 offset:{idx*4}')
            return
        e(f'''s_memrealtime s[90:91]
        s_memtime s[94:95]
        s_waitcnt lgkmcnt(0)
        s_lshl_b32 s92, s2, 8
        s_lshl_b32 s93, s30, 5
        s_add_u32 s92, s92, s93
        s_add_u32 s92, s92, {WS_STAMP+(idx>>2)*0x10000+(idx&3)*4}
        v_mov_b32 v15, s90''')
        e.lq.clear()
        e.vm('st',f'buffer_store_dword v15, off, s[12:15], s92')
        e('v_mov_b32 v15, s94'); e.vm('st',f'buffer_store_dword v15, off, s[12:15], s92 offset:16')
    XR=lambda ks,pt:96+ks*8+pt*4
    WR=lambda f:16+(f%8)*4
    acc=lambda pt,t:48+(t*2+pt)*4
    nspin=[0]
    def check(load,regs,expect,lanes,vm=True):
        i=nspin[0]; nspin[0]+=1
        e(f's_mov_b32 s88, 0\nSPIN{i}:')
        for r in regs[1:]: e(f'v_and_b32 v{regs[0]}, v{regs[0]}, v{r}')
        e(f'''v_cmp_gt_u32 vcc, {expect}, v{regs[0]}
        s_add_u32 s88, s88, 1
        s_nop 0
        s_and_b64 vcc, vcc, {lanes}
        s_cbranch_scc0 GO{i}
        s_cmp_gt_u32 s88, 0x1000
        s_cbranch_scc1 GO{i}
        s_sleep {8 if vm else 2}
        {load}
        {'s_waitcnt vmcnt(0)' if vm else ''}
        s_branch SPIN{i}
        GO{i}:''')
    e(f'''s_cmp_ge_u32 s2, 256
    s_cbranch_scc1 END
    s_load_dwordx4 s[40:43], s[0:1], 0
    s_load_dwordx2 s[44:45], s[0:1], 16
    s_load_dwordx8 s[48:55], s[0:1], 32
    s_load_dwordx4 s[56:59], s[0:1], 64
    s_load_dwordx2 s[12:13], s[0:1], 80
    v_lshrrev_b32 v1, 6, v0
    v_and_b32 v0, 63, v0
    v_readfirstlane_b32 s30, v1
    s_and_b32 s24, s2, 7
    s_lshr_b32 s25, s2, 3
    s_and_b32 s26, s24, 1
    s_lshl_b32 s26, s26, 3
    s_and_b32 s27, s25, 7
    s_add_u32 s26, s26, s27      ; rb
    s_lshr_b32 s27, s24, 1
    s_lshl_b32 s27, s27, 2
    s_lshr_b32 s28, s25, 3
    s_add_u32 s27, s27, s28      ; cs
    s_lshr_b32 s31, s30, 1       ; wm
    s_and_b32 s32, s30, 1        ; wn
    s_lshr_b32 s33, s30, 2       ; half
    s_and_b32 s34, s30, 3
    v_and_b32 v13, 15, v0        ; n
    v_lshrrev_b32 v14, 4, v0     ; g
    s_lshl_b32 s35, s26, 7
    s_lshl_b32 s36, s31, 5
    s_add_u32 s35, s35, s36
    s_add_u32 s35, s35, s32
    v_lshrrev_b32 v16, 3, v0
    v_lshl_add_u32 v16, v16, 1, s35
    v_mul_u32_u24 v16, 1280, v16
    v_and_b32 v17, 7, v0
    v_xor_b32 v17, v17, v14
    v_lshl_add_u32 v1, v17, 4, v16
    v_xor_b32 v17, 4, v17
    v_lshl_add_u32 v2, v17, 4, v16
    v_add_u32 v2, 20480, v2
    s_lshl_b32 s35, s33, 5
    s_and_b32 s36, s31, 1
    s_lshl_b32 s36, s36, 2
    s_add_u32 s35, s35, s36
    s_lshl_b32 s36, s32, 4
    s_add_u32 s35, s35, s36      ; 32kk+4s+16(w&1)
    v_add_u32 v18, s35, v14
    v_mul_u32_u24 v16, 3840, v18
    s_lshl_b32 s36, s27, 8
    v_add_u32 v16, s36, v16
    v_lshlrev_b32 v17, 1, v14
    v_xor_b32 v17, v17, v13
    v_lshl_add_u32 v3, v17, 4, v16
    v_xor_b32 v17, 8, v17
    v_lshl_add_u32 v4, v17, 4, v16
    v_add_u32 v4, {8*3840}, v4
    s_lshl_b32 s60, s30, 11
    s_lshl_b32 s61, s30, 10
    s_and_b32 s35, s25, 7
    s_lshl_b32 s36, s28, 1
    s_add_u32 s35, s35, s36
    s_mul_i32 s35, s35, {0 if 'norot' in var else 5}
    s_lshr_b32 s35, s35, 2
    s_cmp_ge_u32 s35, 10
    s_cselect_b32 s36, 10, 0
    s_sub_u32 s35, s35, s36      ; k rotation
    s_lshl_b32 s62, s35, 7
    s_mul_i32 s63, s35, {64*3840}
    s_mul_i32 s64, s35, {64*3072}
    s_mov_b32 s6, {2048*1280}
    s_mov_b32 s7, 0x20000
    s_mov_b32 s10, {640*3840}
    s_mov_b32 s65, {64*3840}
    s_mov_b32 s11, 0x20000
    s_mov_b32 s14, 0x10000000
    s_mov_b32 s15, 0x20000
    s_waitcnt lgkmcnt(0)
    s_mov_b32 s4, s40
    s_mov_b32 s5, s41
    s_mov_b32 s8, s42
    s_mov_b32 s9, s43
    s_cmp_lg_u32 s27, 15
    s_cbranch_scc1 NOTG
    s_mov_b32 s8, s54
    s_mov_b32 s9, s55
    s_mov_b32 s10, 1280
    s_mov_b32 s63, s62
    s_mov_b32 s65, 128
    v_and_b32 v19, 1, v14
    v_and_b32 v18, 0xfe, v18
    v_lshlrev_b32 v18, 1, v18
    v_add_u32 v20, 16, v18
    v_mov_b32 v21, 0x7ff00000
    v_cmp_eq_u32 vcc, v17, v19
    v_cndmask_b32 v4, v21, v20, vcc
    v_xor_b32 v17, 8, v17
    v_cmp_eq_u32 vcc, v17, v19
    v_cndmask_b32 v3, v21, v18, vcc
    NOTG:''')
    LB=lambda s:(s%5)*SLOT if s<15 else 49152+(s-15)*16384
    def dma(s):
        b=(s%5)*SLOT; t=f'D{s}'
        if s<10:
            return [lambda:(e(f's_add_u32 m0, s60, {b}'),e.vm(t,'buffer_load_dwordx4 v1, s[4:7], s62 offen lds')),
                    lambda:(e('s_add_u32 m0, m0, 1024'),e.vm(t,'buffer_load_dwordx4 v2, s[4:7], s62 offen lds')),
                    lambda:(e(f's_add_u32 m0, m0, {16384-1024}\ns_add_u32 s62, s62, 128'),e.vm(t,'buffer_load_dwordx4 v3, s[8:11], s63 offen lds')),
                    lambda:(e('s_add_u32 m0, m0, 1024'),e.vm(t,'buffer_load_dwordx4 v4, s[8:11], s63 offen lds'),e(f's_add_u32 s63, s63, s65\ns_cmp_eq_u32 s62, 1280\ns_cselect_b32 s62, 0, s62\ns_cselect_b32 s63, 0, s63'))]
        wrap=lambda r:f's_add_u32 s{r}, s{r}, {64*3072}\ns_cmp_eq_u32 s{r}, {640*3072}\ns_cselect_b32 s{r}, 0, s{r}'
        b=LB(s); L=[]
        for hh in range(2):
            if s<15:
                L.append(lambda hh=hh:(e(f's_add_u32 m0, s60, {b+hh*16384}'),e.vm(t,'buffer_load_dwordx4 v1, s[16:19], s64 offen lds')))
                L.append(lambda:(e('s_add_u32 m0, m0, 1024'),e.vm(t,'buffer_load_dwordx4 v2, s[16:19], s64 offen lds'),e(wrap(64))))
            else:
                L.append(lambda hh=hh:(e(f's_add_u32 m0, s61, {b+hh*8192}'),e.vm(t,'buffer_load_dwordx4 v3, s[16:19], s64 offen lds'),e(wrap(64))))
        return L
    stamp(0)
    e.run(dma(0))
    if 'tlb' in var:
        e('''s_cmp_lg_u32 s30, 7
        s_cbranch_scc1 NOTLB
        v_lshlrev_b32 v16, 19, v0
        v_min_u32 v16, 0x1580000, v16
        v_add_u32 v16, 0x7ff80, v16
        buffer_load_dword v17, v16, s[12:15], 0 offen
        s_mov_b32 s18, 0x200000
        s_mov_b32 s19, 0x20000
        v_lshlrev_b32 v16, 16, v0''')
        for p,n in ((48,640*3072),(50,640*3072),(52,1536*1280),(44,640*1280),(56,2048*1280)):
            e(f's_mov_b32 s16, s{p}\ns_mov_b32 s17, s{p+1}\ns_mov_b32 s18, {n}\nbuffer_load_dword v17, v16, s[16:19], 0 offen')
        e('NOTLB:')
    e(f'''s_cmp_eq_u32 s33, 0
    s_cselect_b32 s16, s48, s50
    s_cselect_b32 s17, s49, s51
    s_mov_b32 s18, {640*3072}
    s_mov_b32 s19, 0x20000
    v_lshrrev_b32 v16, 1, v13
    v_xor_b32 v16, v16, v14
    v_lshlrev_b32 v16, 4, v16
    v_lshl_add_u32 v16, v13, 7, v16
    s_lshl_b32 s35, s31, 12
    v_add_u32 v5, s35, v16
    v_xor_b32 v6, 64, v5
    v_lshrrev_b32 v16, 2, v0          ; 4g+r
    v_and_b32 v17, 7, v16
    v_lshlrev_b32 v17, 5, v17
    v_lshl_add_u32 v17, v16, 8, v17
    v_and_b32 v18, 3, v0
    v_lshl_add_u32 v17, v18, 3, v17
    s_lshl_b32 s35, s32, 7
    v_xor_b32 v7, s35, v17
    v_xor_b32 v8, 32, v7
    v_xor_b32 v9, 64, v7
    v_xor_b32 v10, 0x60, v7
    s_barrier''')
    e.run(dma(1))
    SP,GX,GW,T,BP=224,232,240,248,80
    e(f'''s_lshl_b32 s66, s26, 4
    s_add_u32 s66, s66, s27
    s_lshl_b32 s66, s66, 2
    s_add_u32 s66, s66, {WS_F}          ; F1 slot
    s_lshl_b32 s84, s26, 1
    s_add_u32 s84, s84, s33
    s_lshl_b32 s84, s84, 4
    s_add_u32 s84, s84, s27
    s_lshl_b32 s84, s84, 2
    s_add_u32 s84, s84, s34
    s_lshl_b32 s84, s84, 2
    s_add_u32 s84, s84, {WS_F+0x2000}     ; F2a slot
    s_add_u32 s3, s84, 0x2000            ; F2b slot
    s_and_b32 s80, s2, 31        ; head
    s_lshr_b32 s81, s2, 5        ; qb
    s_lshl_b32 s85, s81, 2
    s_add_u32 s85, s85, s31
    s_lshl_b32 s85, s85, 5
    s_add_u32 s85, s85, s80
    s_lshl_b32 s85, s85, 1
    s_add_u32 s85, s85, s32
    s_lshl_b32 s85, s85, 2
    s_add_u32 s85, s85, {WS_F+0x6000}     ; F3 slot
    s_lshl_b32 s67, s31, 8
    s_add_u32 s67, s67, s2
    s_mul_i32 s68, s67, 6554
    s_lshr_b32 s68, s68, 16          ; ks=u/10
    s_mul_i32 s69, s68, 10
    s_sub_u32 s69, s67, s69          ; np
    s_lshr_b32 s35, s68, 1
    s_and_b32 s36, s35, 1
    s_mul_i32 s35, s35, 3
    s_add_u32 s35, s35, s36
    s_and_b32 s36, s68, 1
    s_add_u32 s35, s35, s36          ; B1 row/32
    s_sub_u32 s37, s68, 32
    s_mul_i32 s37, s37, 3
    s_lshl_b32 s36, s36, 1
    s_sub_u32 s37, s37, s36
    s_add_u32 s37, s37, 2            ; B2 row/32
    s_cmp_lt_u32 s68, 32
    s_cselect_b32 s70, s35, s37
    s_lshl_b32 s70, s70, 5
    s_sub_u32 s71, s68, 48
    s_mul_i32 s71, s71, 40
    s_cmp_lt_u32 s68, 48
    s_cselect_b32 s20, s52, s44
    s_cselect_b32 s21, s53, s45
    s_mov_b32 s22, {640*1280}
    s_cselect_b32 s22, {1536*1280}, s22
    s_mov_b32 s23, 0x20000
    s_cselect_b32 s70, s70, s71
    s_cselect_b32 s76, 16, 20
    s_cselect_b32 s77, 8, 4
    s_cselect_b32 s78, 4, 8
    s_sub_u32 s71, s68, 64
    s_mul_i32 s71, s71, 160
    s_add_u32 s71, s71, 16
    s_cmp_lt_u32 s68, 64
    s_cselect_b32 s70, s70, s71
    s_cselect_b32 s76, s76, 0x50
    s_cselect_b32 s77, s77, 40
    s_cselect_b32 s78, s78, 20
    s_mul_i32 s78, s78, s32
    s_add_u32 s70, s70, s78
    s_mul_i32 s70, s70, 1280
    s_mul_i32 s78, s76, 1280
    s_lshl_b32 s71, s69, 7
    s_add_u32 s70, s70, s71
    s_lshl_b32 s79, s26, 2
    s_add_u32 s79, s79, s31
    s_lshl_b32 s79, s79, 7
    s_add_u32 s79, s79, {WS_G}
    s_mov_b32 s54, s76
    s_mov_b32 s55, s77
    s_mov_b32 s48, s58
    s_mov_b32 s49, s59
    s_mov_b32 s50, 256
    s_mov_b32 s51, 0x20000
    s_lshl_b32 s76, s69, 1
    s_add_u32 s76, s76, s32
    s_lshl_b32 s76, s76, 1
    s_add_u32 s77, s76, 1''')
    for r in (76,77):
        e(f'''s_mul_i32 s35, s{r}, 13108
        s_lshr_b32 s35, s35, 16
        s_mul_i32 s36, s35, 5
        s_sub_u32 s36, s{r}, s36
        s_mul_i32 s35, s35, 68
        s_add_u32 s35, s35, s68
        s_mul_i32 s35, s35, 5
        s_add_u32 s35, s35, s36
        s_lshl_b32 s35, s35, 10
        s_add_u32 s35, s35, {WS_WP}
        s_cmp_ge_u32 s67, 680
        s_cselect_b32 s{r}, 0x7ff00000, s35''')
    e(f'''s_lshr_b32 s35, s26, 1
    s_mul_i32 s35, s35, 480
    s_lshl_b32 s36, s27, 5
    s_add_u32 s35, s35, s36
    s_lshl_b32 s36, s32, 4
    s_add_u32 s35, s35, s36
    s_lshl_b32 s35, s35, 11
    s_and_b32 s36, s26, 1
    s_lshl_b32 s36, s36, 10
    s_add_u32 s35, s35, s36
    s_lshl_b32 s36, s31, 8
    s_add_u32 s35, s35, s36
    s_cmp_eq_u32 s27, 15
    s_cselect_b32 s46, 0x7ff00000, s35
    s_lshl_b32 s35, s26, 1
    s_add_u32 s35, s35, s33
    s_mul_i32 s35, s35, {PBS}
    s_and_b32 s36, s31, 1
    s_lshl_b32 s36, s36, 9
    s_add_u32 s35, s35, s36
    s_add_u32 s35, s35, {WS_AP}
    s_lshl_b32 s36, s27, 1
    s_add_u32 s36, s36, s32
    s_lshl_b32 s37, s36, 12
    s_add_u32 s47, s35, s37
    s_lshl_b32 s37, s36, 11
    s_add_u32 s29, s35, s37
    s_add_u32 s29, s29, {128*1024}''')
    def resets():
        e('''v_mov_b32 v11, 0
        v_mov_b32 v12, s84
        v_writelane_b32 v12, s3, 1
        v_writelane_b32 v12, s85, 2
        v_writelane_b32 v12, s66, 3
        s_cmp_eq_u32 s30, 0
        s_cselect_b64 exec, 15, 7''')
        e.vm('rst',f'buffer_store_dword v11, v12, s[12:15], 0 offen {SC}')
        e('s_mov_b64 exec, -1')
    GX,GW,Z,Z2=80,88,11,12
    def g_loads():
        return [lambda j=j:(e('v_lshlrev_b32 v10, 4, v0'),e.vm('gl',f'buffer_load_dwordx4 {vr(GX+4*j,4)}, v10, s[4:7], s71 offen offset:{1024*j}'),e.vm('gl',f'buffer_load_dwordx4 {vr(GW+4*j,4)}, v10, s[72:75], 0 offen offset:{1024*j}')) for j in range(2)]
    def g_finish():
        dpp=lambda d:f'v_add_f32_dpp v{Z}, v{Z}, v{Z} {d} row_mask:0xf bank_mask:0xf'
        L=[lambda:(e.wait(vm=['gl']),e(f'v_mov_b32 v{Z}, 0\nv_mov_b32 v{Z2}, 0\nv_cmp_gt_u32 vcc, 16, v0'))]
        L+=[f'v_dot2c_f32_bf16 v{Z}, v{GX+j}, v{GW+j}\nv_dot2c_f32_bf16 v{Z2}, v{GX+4+j}, v{GW+4+j}' for j in range(4)]
        L+=[f'v_cndmask_b32 v{Z2}, 0, v{Z2}, vcc\nv_add_f32 v{Z}, v{Z}, v{Z2}',dpp('quad_perm:[1,0,3,2]'),dpp('quad_perm:[2,3,0,1]'),dpp('row_half_mirror'),dpp('row_mirror'),
            f'v_readlane_b32 s35, v{Z}, 16\nv_readlane_b32 s36, v{Z}, 32\nv_readlane_b32 s37, v{Z}, 48',
            f'v_add_f32 v{Z}, s35, v{Z}\nv_add_f32 v{Z}, s36, v{Z}\nv_add_f32 v{Z}, s37, v{Z}\nv_mul_f32 v{Z}, 0xbfb8aa3b, v{Z}\nv_exp_f32 v{Z}, v{Z}',
            f'v_add_f32 v{Z}, 1.0, v{Z}\nv_rcp_f32 v{Z}, v{Z}',
            lambda:(e('s_mov_b64 exec, 1'),e.vm('pub1b',f'buffer_store_dword v{Z}, off, s[12:15], s79 {SC}'),e('s_mov_b64 exec, -1'))]
        return L
    def prefetch():
        return [f'''s_lshl_b32 s35, s25, 2
        s_add_u32 s35, s35, s34
        s_mul_i32 s35, s35, {5*3072}
        s_lshr_b32 s36, s24, 1
        s_mul_i32 s36, s36, 768
        s_add_u32 s35, s35, s36
        v_mul_u32_u24 v11, 43, v0
        v_lshrrev_b32 v11, 8, v11
        v_mul_u32_u24 v11, {3072-768}, v11
        v_lshl_add_u32 v11, v0, 7, v11''',
        lambda:(e('s_mov_b64 exec, 0x3fffffff'),e.vm('pf','buffer_load_dword v80, v11, s[16:19], s35 offen'),e('s_mov_b64 exec, -1')),
        f'''v_bfe_u32 v11, v0, 3, 1
        v_mul_u32_u24 v11, s54, v11
        v_bfe_u32 v12, v0, 2, 1
        v_mad_u32_u24 v11, v12, s55, v11
        v_and_b32 v12, 3, v0
        v_add_u32 v11, v11, v12
        v_mul_u32_u24 v11, 1280, v11
        v_mad_u32_u24 v11, v14, s78, v11''',
        lambda:(e('s_mov_b32 exec_hi, 0'),e.vm('pf','buffer_load_dword v80, v11, s[20:23], s70 offen'),e('s_mov_b32 exec_hi, -1'))]
    def pack_dma():
        return [f'''v_lshrrev_b32 v11, 5, v0
        v_bfe_u32 v12, v0, 3, 2
        v_mad_u32_u24 v11, v11, s55, v12
        v_mul_u32_u24 v11, 1280, v11''',f'''v_lshlrev_b32 v12, 1, v14
        v_and_b32 v2, 7, v0
        v_xor_b32 v12, v12, v2
        v_lshl_add_u32 v11, v12, 4, v11''',
        lambda:(e('s_mov_b32 m0, s60'),e.vm('pk','buffer_load_dwordx4 v11, s[20:23], s70 offen lds'))]+['']*P('pg',4)+[
        lambda:(e('s_add_u32 m0, m0, 1024\ns_add_u32 s70, s70, s78'),e.vm('pk','buffer_load_dwordx4 v11, s[20:23], s70 offen lds'))]
    def pack_finish():
        L=['''s_lshl_b32 s35, s31, 12
        v_and_b32 v11, 0xfff, v7
        v_add_u32 v11, s35, v11
        v_xor_b32 v12, 32, v11
        v_lshlrev_b32 v5, 4, v0''']
        for u in range(2): L.append(lambda u=u:[e.ds(('pk',u),f'ds_read_b64_tr_b16 {vr(80+4*u+2*h,2)}, v{11+u} offset:{h*2048}') for h in range(2)])
        for u in range(2): L+=['']*5; L.append(lambda u=u:(e.wait(ds=[('pk',u)]),e.vm('pub1b',f'buffer_store_dwordx4 {vr(80+4*u,4)}, v5, s[12:15], s{76+u} offen {SC}')))
        return L
    def dmaB_addr():
        return [f'''s_lshr_b32 s35, s34, 1
        s_lshl_b32 s35, s35, 5
        s_lshl_b32 s36, s32, 2
        s_add_u32 s35, s35, s36
        s_mul_i32 s35, s35, 3072
        s_mul_i32 s36, s27, 192
        s_add_u32 s35, s35, s36
        s_and_b32 s36, s27, 1
        s_lshl_b32 s37, s36, 6
        s_add_u32 s37, s37, s35          ; B1
        s_lshl_b32 s36, s36, 7
        s_sub_u32 s35, s35, s36
        s_add_u32 s35, s35, 128          ; B2
        v_lshrrev_b32 v11, 3, v0
        v_and_b32 v12, 4, v11
        v_add_u32 v11, v11, v12          ; 8(rl>>2)+(rl&3)
        v_mul_u32_u24 v11, 3072, v11
        v_and_b32 v12, 7, v0
        v_lshlrev_b32 v4, 1, v14
        v_xor_b32 v12, v12, v4
        v_lshl_add_u32 v11, v12, 4, v11
        v_add_u32 v1, s37, v11
        v_add_u32 v2, {16*3072}, v1''',f'''v_lshrrev_b32 v11, 2, v0
        v_and_b32 v12, 12, v11
        v_add_u32 v11, v11, v12
        v_mul_u32_u24 v11, 3072, v11
        v_and_b32 v12, 3, v0
        v_and_b32 v4, 2, v4
        v_xor_b32 v12, v12, v4
        v_lshl_add_u32 v11, v12, 4, v11
        v_add_u32 v3, s35, v11''']
    rdB=f'''v_lshrrev_b32 v11, 2, v0
    v_and_b32 v12, 3, v0
    v_lshlrev_b32 v12, 3, v12
    v_lshl_add_u32 v9, v11, 6, v12
    v_lshl_add_u32 v12, v11, 7, v12
    v_bfe_u32 v11, v0, 3, 2
    s_lshl_b32 s35, s32, 1
    v_xor_b32 v11, s35, v11
    v_lshl_add_u32 v7, v11, 5, v12
    v_xor_b32 v8, 32, v7'''
    rdB2=f'''v_and_b32 v11, 1, v14
    v_xor_b32 v11, s32, v11
    v_lshl_add_u32 v9, v11, 5, v9
    v_add_u32 v9, 49152, v9
    v_lshlrev_b32 v5, 4, v13
    v_lshl_add_u32 v5, v14, 11, v5
    v_lshlrev_b32 v6, 5, v13
    v_and_b32 v12, 1, v14
    v_lshl_add_u32 v6, v12, 4, v6
    v_lshrrev_b32 v12, 1, v14
    v_lshl_add_u32 v6, v12, 10, v6'''
    F=[]
    for s in range(20):
        for kk in range(2 if s<10 else 4):
            for t in range(4 if s<15 else 2): F.append((s,kk,t))
    def reads(f):
        s,kk,t=F[f]; o=(s%5&1)*SLOT; L=[]
        for h in range(2):
            d=vr(WR(f)+2*h,2)
            if s<10: L.append(f'ds_read_b64_tr_b16 {d}, v{7+t} offset:{o+16384+kk*8192+h*4096}')
            elif s<15: L.append(f'ds_read_b64_tr_b16 {d}, v{7+(t>>1)} offset:{o+(kk>>1)*16384+(t&1)*8192+(kk&1)*4096+h*2048}')
            else: L.append(f'ds_read_b64_tr_b16 {d}, v9 offset:{((s-15)&3)*16384+(kk>>1)*8192+t*4096+(kk&1)*2048+h*1024}')
        if s<10 and t==0: L=[f'ds_read_b128 {vr(XR(2*s+kk,pt),4)}, v{5+kk} offset:{o+pt*2048}' for pt in range(2)]+L
        return L
    def mf(f,pt):
        s,kk,t=F[f]; ks=2*s+kk if s<10 else 4*(s%5)+kk
        a=vr(acc(pt,t+(4 if s>=15 else 0)),4)
        return f'v_mfma_f32_16x16x32_bf16 {a}, {vr(WR(f),4)}, {vr(XR(ks,pt),4)}, {a if ks else 0}'
    def silu(T,tag,sreg,off):
        g=acc(0,2*T); u=acc(0,2*T+1); L=[]
        for i in range(8): L.append(f'v_mul_f32 v{u+i}, v{g+i}, v{u+i}\nv_mul_f32 v{g+i}, 0xbfb8aa3b, v{g+i}')
        for i in range(8): L.append(f'v_exp_f32 v{g+i}, v{g+i}')
        for i in range(8): L.append(f'v_add_f32 v{g+i}, 1.0, v{g+i}')
        for i in range(8): L.append(f'v_rcp_f32 v{g+i}, v{g+i}')
        for i in range(8): L.append(f'v_mul_f32 v{g+i}, v{g+i}, v{u+i}')
        for i in range(4): L.append(f'v_cvt_pk_bf16_f32 v{u+i}, v{g+2*i}, v{g+2*i+1}')
        L=['\n'.join(L[i:i+4]) for i in range(0,len(L),4)]
        L.append(lambda:(e(f'v_permlane16_swap_b32 v{u}, v{u+2}\nv_permlane16_swap_b32 v{u+1}, v{u+3}'),e.vm(tag,f'buffer_store_dwordx4 {vr(u,4)}, v6, s[12:15], s{sreg} offen offset:{off} {SC}')))
        return L
    extra=[]
    AQ=96
    def kv_loads():
        L=[f'''s_lshr_b32 s35, s34, 1
        s_add_u32 s35, s35, s81
        s_add_u32 s35, s35, 7
        s_and_b32 s35, s35, 7
        s_mul_i32 s35, s35, 480
        s_mul_i32 s82, s80, 5
        s_add_u32 s37, s33, 1
        s_mul_i32 s37, s37, 160
        s_add_u32 s35, s35, s82
        s_add_u32 s35, s35, s37
        s_lshl_b32 s35, s35, 11
        s_lshl_b32 s37, s32, 10
        s_add_u32 s35, s35, s37
        s_mul_i32 s37, s33, {5*PS}
        s_lshl_b32 s38, s34, 10
        s_add_u32 s52, s37, s38
        s_mov_b32 s53, s35
        v_lshlrev_b32 v1, 4, v0''']
        for i in range(5): L.append(lambda i=i:(e(f's_add_u32 m0, s52, {i*PS}'),e.vm('kv',f'buffer_load_dwordx4 v1, s[12:15], s53 offen {SC} lds'),e('s_add_u32 s53, s53, 2048')))
        L.append(f'''s_mul_i32 s38, s81, 480
        s_add_u32 s38, s38, s82
        s_lshl_b32 s38, s38, 11
        s_lshl_b32 s39, s30, 8
        s_add_u32 s38, s38, s39
        s_add_u32 s39, s38, 8192
        v_and_b32 v2, 31, v0       ; qq
        v_lshrrev_b32 v3, 5, v0    ; h
        v_lshlrev_b32 v11, 3, v2
        v_lshl_add_u32 v12, v3, 12, v11''')
        L.append(lambda:(e.vm('kv',f'buffer_load_dwordx2 {vr(AQ,2)}, v12, s[12:15], s38 offen {SC}'),e.vm('kv',f'buffer_load_dwordx2 {vr(AQ+2,2)}, v12, s[12:15], s38 offen offset:2048 {SC}')))
        L.append(lambda:e.vm('kv',f'buffer_load_dwordx2 {vr(AQ+4,2)}, v11, s[12:15], s39 offen {SC}'))
        L.append(lambda:(e(f'''v_mov_b32 v104, 0x3f803f80
        v_mov_b32 v105, 0x3f803f80
        s_lshl_b32 s38, s30, 9
        v_lshl_add_u32 v11, v0, 3, s38'''),e.ds('ones',f'ds_write_b64 v11, v[104:105] offset:{10*PS}'),e('v_mov_b32 v103, 0\nv_lshlrev_b32 v11, 2, v0'),e.ds('ones',f'ds_write_b32 v11, v103 offset:{LFLAG}')))
        return L
    cntload=f'buffer_load_dword v4, v10, s[48:51], 0 offen {SC}'
    f1sub=f'buffer_load_dword v4, v10, s[12:15], s83 offen {SC}'
    f1all=f'buffer_load_dwordx4 v[112:115], v1, s[12:15], s83 offen {SC}'
    w0=lambda tag,body:f's_cmp_lg_u32 s30, 0\ns_cbranch_scc1 {tag}\n{body}\n{tag}:'
    fstore=lambda sreg,val,r:f'v_mov_b32 v{r}, {val}\ns_mov_b64 exec, 1\nbuffer_store_dword v{r}, off, s[12:15], s{sreg} {SC}\ns_mov_b64 exec, -1'
    e.flag=lambda sreg:e(fstore(sreg,1,12))
    slow=[]
    P=lambda k,d:int(var.split(k+'=')[1].split('_')[0].split()[0]) if k+'=' in var else d
    e.P=P
    PUB1=P('p1',13); KVB=P('kv',15); PUB1B=P('p1b',17)
    kv=kv_loads()
    def boundary(s):
        nonlocal extra,slow
        e.run(extra); extra=[]
        if s in (14,15): e.run(slow); slow=[]
        tags=[f'D{s}']
        if s==5: tags.append('rst')
        if s==14: tags.append('pk')
        if s==PUB1: tags.append('pub1')
        if s==PUB1B: tags.append('pub1b')
        e.wait(vm=tags)
        if s in (13,KVB):
            tg='cnt' if s==13 else 'f1'
            n=len(e.vq)-1-e.vq.index(tg) if tg in e.vq else 63
            e(f's_cmp_lg_u32 s30, 0\ns_cbranch_scc1 NOCHK{s}\ns_waitcnt vmcnt({len([x for x in e.vq[::-1][:n] if x not in e.mark])})')
            if s==13: check(cntload,[4],64,15)
            else: check(f1sub,[4],1,-1)
            e(f'NOCHK{s}:')
        e('s_barrier')
        if s==0: stamp(1)
        else: fine()
        if s==10: e(rdB); extra.append(rdB2)
        elif s==19: e('v_add_u32 v9, 0x10000, v9')
        elif 0<s<15 and s%5 in (0,2,4):
            d=65536 if s%5 else -131072&0xffffffff
            for r in (range(5,11) if s<10 else (7,8)): e(f'v_add_u32 v{r}, {hex(d)}, v{r}')
        if s==PUB1: e(w0('NOF1',fstore(66,1,12)))
        if s==PUB1B: e(w0('NOF1B',fstore(66,3,4)))
        if s==7: extra+=dmaB_addr()
        if s==KVB-1: extra+=['']*P('fd',8 if s<15 else 2)+[lambda:(e(f'''s_lshl_b32 s35, s81, 5
            s_sub_u32 s35, s35, 32
            v_add_u32 v10, s35, v0
            v_and_b32 v10, 0xff, v10
            v_lshlrev_b32 v10, 2, v10
            s_mov_b32 s83, {WS_F}
            '''+w0('NOP1',f1sub)),e.vq.append('f1'))]
        for d in {0:[2,3],12:[],13:[15],14:[16,17],15:[18,19]}.get(s,[s+3] if s<12 else []): extra=dma(d)+extra if s==KVB-1 and d%2==0 else extra+dma(d)
        if s==1: extra.append(resets)
        if s==P('pf',99): extra+=prefetch()
        if s==5: extra.append('s_and_b32 s35, s2, 3\ns_lshl_b32 s35, s35, 6\n'+w0('NOCNT',f'v_mov_b32 v11, 1\ns_mov_b64 exec, 1\nbuffer_atomic_add v11, off, s[48:51], s35 {SC}\ns_mov_b64 exec, -1'))
        if s==12: extra+=[lambda:(e('v_lshlrev_b32 v10, 6, v0\n'+w0('NOC',cntload)),e.vq.append('cnt'))]+pack_dma()
        if s==P('ps',14): slow+=['']*P('pd',0)+pack_finish()
        if KVB==15:
            if s==15: extra+=kv[:3]
            if s==16: extra+=[kv[3],'','',kv[4],'','',kv[5]]
            if s==17: extra+=kv[6:]
        else:
            if s==16: extra+=[kv[0],kv[1],'',kv[2],'',kv[3],'',kv[4]]
            if s==17: extra+=[kv[5],kv[6],'',kv[7],'',kv[8],kv[9]]
        if s==18:
            from mega2 import setup
            slow+=setup()
    LA=6
    if 'nopg' not in var:
        for r in range(P('pr',1)):
            for i in range(8): e(f's_cmp_eq_u32 s30, {i}\ns_cbranch_scc1 PG{i}')
        e('WARMED:')
    boundary(0)
    for f in range(LA):
        for x in reads(f): e.ds(f,x)
        if extra: e.run([extra.pop(0)])
    for f in range(len(F)):
        n=f+LA; r=[]
        if n<len(F):
            if F[n][1:]==(0,0): boundary(F[n][0])
            r=reads(n)
        e.wait(ds=[f])
        e(mf(f,0))
        for x in r[:len(r)//2]: e.ds(n,x)
        if slow: e.run([slow.pop(0)])
        e(mf(f,1))
        for x in r[len(r)//2:]: e.ds(n,x)
        if extra: e.run([extra.pop(0)])
        if f==79:
            stamp(2)
            e('s_lshl_b32 s35, s27, 1\ns_add_u32 s35, s35, s32\ns_cmp_eq_u32 s35, 30\ns_cbranch_scc1 GATE\nGATED:')
            e.ool.append(f'''GATE:
            s_nop 7
            v_permlane32_swap_b32 v49, v50
            v_permlane32_swap_b32 v53, v54
            v_add_f32 v48, v48, v50
            v_add_f32 v49, v52, v54
            v_mul_f32 v48, 0xbfb8aa3b, v48
            v_mul_f32 v49, 0xbfb8aa3b, v49
            v_exp_f32 v48, v48
            v_exp_f32 v49, v49
            v_lshlrev_b32 v50, 3, v0
            v_add_f32 v48, 1.0, v48
            v_add_f32 v49, 1.0, v49
            v_rcp_f32 v48, v48
            v_rcp_f32 v49, v49
            s_mov_b64 exec, 0xffff
            buffer_store_dwordx2 v[48:49], v50, s[12:15], s79 offen {SC}
            s_mov_b64 exec, -1
            s_branch GATED''')
            for t in range(4):
                R=80+4*t
                for pt in range(2):
                    a=acc(pt,t); e(f'v_cvt_pk_bf16_f32 v{R+2*pt}, v{a}, v{a+1}\nv_cvt_pk_bf16_f32 v{R+2*pt+1}, v{a+2}, v{a+3}')
                slow+=[lambda R=R:(e.vm('pub1',f'buffer_store_dwordx4 {vr(R,4)}, v5, s[12:15], s46 offen {SC}'),e('s_add_u32 s46, s46, 8192'))]+['']*(P('qs',6)-1)
        if f==160:
            a,b=silu(0,'pub2a',47,0),silu(1,'pub2a',47,2048)
            slow+=a[:-1]+b[:-1]+[a[-1],b[-1]] if 'hs' in var else a+b
    e.run(extra); e.run(slow)
    e.wait(vm=['kv'])
    e('s_waitcnt lgkmcnt(0)\ns_barrier\ns_setprio 2'); e.lq.clear()
    stamp(3)
    e.run(silu(2,'pub2b',29,0))
    from mega2 import tail
    tail(e,stamp,check,var)
    e('END:\ns_endpgm')
    for x in e.ool: e(x)
    return ('gated_mix__sliding_block__swiglu_ffn__prompt_kernel',e.text() if 'nopg' in var else paginate(e.text(),8),256,512,163840,256)
if __name__=='__main__':
    k=gen('stamp' in sys.argv,' '.join(sys.argv[2:]))
    s=module([k])
    if 'single' in sys.argv: s=s.replace(f'; @launch kernel={k[0]} ','; @launch ')
    open(sys.argv[1],'w').write(s)
```

```python
from asmlib import *
import sys
WS_AP=0x800000; PBS=272*1024; OCT_O=192; WS_WP=0x1200000; WS_G=0x1500000; WS_F=0x1510000; WS_STAMP=0x1600000
PS=4128; LFLAG=45440; SLOT=32768; WPL=61440
SC='sc1'
def gen(st=False,var=''):
    e=Q()
    nf=[0]
    def fine():
        if not(st and 'fine' in var): return
        if nf[0]: e(f'v_writelane_b32 v15, s90, {nf[0]-1}')
        e('s_memrealtime s[90:91]'); nf[0]+=1
    e.fine=fine; e.ool=[]
    def stamp(idx):
        if not st: return
        if 'chan' in var:
            k=int(var.split('chan=')[1].split()[0])
            if idx==0: e('s_memrealtime s[96:97]\ns_waitcnt lgkmcnt(0)\ns_mov_b32 s98, s96')
            if idx==k and k: e('s_memrealtime s[98:99]')
            if idx==9:
                e('''s_waitcnt lgkmcnt(0)
                s_cmp_lg_u32 s2, 100
                s_cbranch_scc1 END
                s_sub_u32 s98, s98, s96
                s_mul_i32 s98, s98, 4
                s_add_u32 s98, s98, 5000
                CH:
                s_memrealtime s[90:91]
                s_waitcnt lgkmcnt(0)
                s_sub_u32 s90, s90, s96
                s_cmp_lt_u32 s90, s98
                s_cbranch_scc1 CH''')
            return
        if 'fine' in var:
            fine()
            if idx==9:
                e(f's_waitcnt lgkmcnt(0)'); fine()
                e(f's_lshl_b32 s92, s2, 10\ns_lshl_b32 s93, s30, 8\ns_add_u32 s92, s92, s93\ns_add_u32 s92, s92, {WS_STAMP}\nv_lshlrev_b32 v1, 2, v0\nbuffer_store_dword v15, v1, s[12:15], s92 offen')
            return
        if 'dbg' in var:
            e(f's_memrealtime s[90:91]\ns_waitcnt lgkmcnt(0)'); e.lq.clear()
            if idx==0: e('s_mov_b32 s96, s58\ns_mov_b32 s97, s59\ns_mov_b32 s98, 256\ns_mov_b32 s99, 0x20000\ns_mov_b32 s89, s90\ns_lshl_b32 s92, s2, 3\ns_add_u32 s92, s92, s30\ns_cmp_eq_u32 s92, 800\ns_cselect_b32 s98, 256, 0'); return
            e(f's_sub_u32 s90, s90, s89\nv_mov_b32 v15, s90')
            e.vm('st',f'buffer_store_dword v15, off, s[96:99], 0 offset:{idx*4}')
            return
        e(f'''s_memrealtime s[90:91]
        s_memtime s[94:95]
        s_waitcnt lgkmcnt(0)
        s_lshl_b32 s92, s2, 8
        s_lshl_b32 s93, s30, 5
        s_add_u32 s92, s92, s93
        s_add_u32 s92, s92, {WS_STAMP+(idx>>2)*0x10000+(idx&3)*4}
        v_mov_b32 v15, s90''')
        e.lq.clear()
        e.vm('st',f'buffer_store_dword v15, off, s[12:15], s92')
        e('v_mov_b32 v15, s94'); e.vm('st',f'buffer_store_dword v15, off, s[12:15], s92 offset:16')
    XR=lambda ks,pt:96+ks*8+pt*4
    WR=lambda f:16+(f%8)*4
    acc=lambda pt,t:48+(t*2+pt)*4
    nspin=[0]
    def check(load,regs,expect,lanes,vm=True):
        i=nspin[0]; nspin[0]+=1
        e(f's_mov_b32 s88, 0\nSPIN{i}:')
        for r in regs[1:]: e(f'v_and_b32 v{regs[0]}, v{regs[0]}, v{r}')
        e(f'''v_cmp_gt_u32 vcc, {expect}, v{regs[0]}
        s_add_u32 s88, s88, 1
        s_nop 0
        s_and_b64 vcc, vcc, {lanes}
        s_cbranch_scc0 GO{i}
        s_cmp_gt_u32 s88, 0x1000
        s_cbranch_scc1 GO{i}
        s_sleep {8 if vm else 2}
        {load}
        {'s_waitcnt vmcnt(0)' if vm else ''}
        s_branch SPIN{i}
        GO{i}:''')
    e(f'''s_cmp_ge_u32 s2, 256
    s_cbranch_scc1 END
    s_load_dwordx4 s[40:43], s[0:1], 0
    s_load_dwordx2 s[44:45], s[0:1], 16
    s_load_dwordx8 s[48:55], s[0:1], 32
    s_load_dwordx4 s[56:59], s[0:1], 64
    s_load_dwordx2 s[12:13], s[0:1], 80
    v_lshrrev_b32 v1, 6, v0
    v_and_b32 v0, 63, v0
    v_readfirstlane_b32 s30, v1
    s_and_b32 s24, s2, 7
    s_lshr_b32 s25, s2, 3
    s_and_b32 s26, s24, 1
    s_lshl_b32 s26, s26, 3
    s_and_b32 s27, s25, 7
    s_add_u32 s26, s26, s27      ; rb
    s_lshr_b32 s27, s24, 1
    s_lshl_b32 s27, s27, 2
    s_lshr_b32 s28, s25, 3
    s_add_u32 s27, s27, s28      ; cs
    s_lshr_b32 s31, s30, 1       ; wm
    s_and_b32 s32, s30, 1        ; wn
    s_lshr_b32 s33, s30, 2       ; half
    s_and_b32 s34, s30, 3
    v_and_b32 v13, 15, v0        ; n
    v_lshrrev_b32 v14, 4, v0     ; g
    s_lshl_b32 s35, s26, 7
    s_lshl_b32 s36, s31, 5
    s_add_u32 s35, s35, s36
    s_add_u32 s35, s35, s32
    v_lshrrev_b32 v16, 3, v0
    v_lshl_add_u32 v16, v16, 1, s35
    v_mul_u32_u24 v16, 1280, v16
    v_and_b32 v17, 7, v0
    v_xor_b32 v17, v17, v14
    v_lshl_add_u32 v1, v17, 4, v16
    v_xor_b32 v17, 4, v17
    v_lshl_add_u32 v2, v17, 4, v16
    v_add_u32 v2, 20480, v2
    s_lshl_b32 s35, s33, 5
    s_and_b32 s36, s31, 1
    s_lshl_b32 s36, s36, 2
    s_add_u32 s35, s35, s36
    s_lshl_b32 s36, s32, 4
    s_add_u32 s35, s35, s36      ; 32kk+4s+16(w&1)
    v_add_u32 v18, s35, v14
    v_mul_u32_u24 v16, 3840, v18
    s_lshl_b32 s36, s27, 8
    v_add_u32 v16, s36, v16
    v_lshlrev_b32 v17, 1, v14
    v_xor_b32 v17, v17, v13
    v_lshl_add_u32 v3, v17, 4, v16
    v_xor_b32 v17, 8, v17
    v_lshl_add_u32 v4, v17, 4, v16
    v_add_u32 v4, {8*3840}, v4
    s_lshl_b32 s60, s30, 11
    s_lshl_b32 s61, s30, 10
    s_and_b32 s35, s25, 7
    s_lshl_b32 s36, s28, 1
    s_add_u32 s35, s35, s36
    s_mul_i32 s35, s35, {0 if 'norot' in var else 5}
    s_lshr_b32 s35, s35, 2
    s_cmp_ge_u32 s35, 10
    s_cselect_b32 s36, 10, 0
    s_sub_u32 s35, s35, s36      ; k rotation
    s_lshl_b32 s62, s35, 7
    s_mul_i32 s63, s35, {64*3840}
    s_mul_i32 s64, s35, {64*3072}
    s_mov_b32 s6, {2048*1280}
    s_mov_b32 s7, 0x20000
    s_mov_b32 s10, {640*3840}
    s_mov_b32 s65, {64*3840}
    s_mov_b32 s11, 0x20000
    s_mov_b32 s14, 0x10000000
    s_mov_b32 s15, 0x20000
    s_waitcnt lgkmcnt(0)
    s_mov_b32 s4, s40
    s_mov_b32 s5, s41
    s_mov_b32 s8, s42
    s_mov_b32 s9, s43
    s_cmp_lg_u32 s27, 15
    s_cbranch_scc1 NOTG
    s_mov_b32 s8, s54
    s_mov_b32 s9, s55
    s_mov_b32 s10, 1280
    s_mov_b32 s63, s62
    s_mov_b32 s65, 128
    v_and_b32 v19, 1, v14
    v_and_b32 v18, 0xfe, v18
    v_lshlrev_b32 v18, 1, v18
    v_add_u32 v20, 16, v18
    v_mov_b32 v21, 0x7ff00000
    v_cmp_eq_u32 vcc, v17, v19
    v_cndmask_b32 v4, v21, v20, vcc
    v_xor_b32 v17, 8, v17
    v_cmp_eq_u32 vcc, v17, v19
    v_cndmask_b32 v3, v21, v18, vcc
    NOTG:''')
    LB=lambda s:(s%5)*SLOT if s<15 else 49152+(s-15)*16384
    def dma(s):
        b=(s%5)*SLOT; t=f'D{s}'
        if s<10:
            return [lambda:(e(f's_add_u32 m0, s60, {b}'),e.vm(t,'buffer_load_dwordx4 v1, s[4:7], s62 offen lds')),
                    lambda:(e('s_add_u32 m0, m0, 1024'),e.vm(t,'buffer_load_dwordx4 v2, s[4:7], s62 offen lds')),
                    lambda:(e(f's_add_u32 m0, m0, {16384-1024}\ns_add_u32 s62, s62, 128'),e.vm(t,'buffer_load_dwordx4 v3, s[8:11], s63 offen lds')),
                    lambda:(e('s_add_u32 m0, m0, 1024'),e.vm(t,'buffer_load_dwordx4 v4, s[8:11], s63 offen lds'),e(f's_add_u32 s63, s63, s65\ns_cmp_eq_u32 s62, 1280\ns_cselect_b32 s62, 0, s62\ns_cselect_b32 s63, 0, s63'))]
        wrap=lambda r:f's_add_u32 s{r}, s{r}, {64*3072}\ns_cmp_eq_u32 s{r}, {640*3072}\ns_cselect_b32 s{r}, 0, s{r}'
        b=LB(s); L=[]
        for hh in range(2):
            if s<15:
                L.append(lambda hh=hh:(e(f's_add_u32 m0, s60, {b+hh*16384}'),e.vm(t,'buffer_load_dwordx4 v1, s[16:19], s64 offen lds')))
                L.append(lambda:(e('s_add_u32 m0, m0, 1024'),e.vm(t,'buffer_load_dwordx4 v2, s[16:19], s64 offen lds'),e(wrap(64))))
            else:
                L.append(lambda hh=hh:(e(f's_add_u32 m0, s61, {b+hh*8192}'),e.vm(t,'buffer_load_dwordx4 v3, s[16:19], s64 offen lds'),e(wrap(64))))
        return L
    stamp(0)
    e.run(dma(0))
    if 'tlb' in var:
        e('''s_cmp_lg_u32 s30, 7
        s_cbranch_scc1 NOTLB
        v_lshlrev_b32 v16, 19, v0
        v_min_u32 v16, 0x1580000, v16
        v_add_u32 v16, 0x7ff80, v16
        buffer_load_dword v17, v16, s[12:15], 0 offen
        s_mov_b32 s18, 0x200000
        s_mov_b32 s19, 0x20000
        v_lshlrev_b32 v16, 16, v0''')
        for p,n in ((48,640*3072),(50,640*3072),(52,1536*1280),(44,640*1280),(56,2048*1280)):
            e(f's_mov_b32 s16, s{p}\ns_mov_b32 s17, s{p+1}\ns_mov_b32 s18, {n}\nbuffer_load_dword v17, v16, s[16:19], 0 offen')
        e('NOTLB:')
    e(f'''s_cmp_eq_u32 s33, 0
    s_cselect_b32 s16, s48, s50
    s_cselect_b32 s17, s49, s51
    s_mov_b32 s18, {640*3072}
    s_mov_b32 s19, 0x20000
    v_lshrrev_b32 v16, 1, v13
    v_xor_b32 v16, v16, v14
    v_lshlrev_b32 v16, 4, v16
    v_lshl_add_u32 v16, v13, 7, v16
    s_lshl_b32 s35, s31, 12
    v_add_u32 v5, s35, v16
    v_xor_b32 v6, 64, v5
    v_lshrrev_b32 v16, 2, v0          ; 4g+r
    v_and_b32 v17, 7, v16
    v_lshlrev_b32 v17, 5, v17
    v_lshl_add_u32 v17, v16, 8, v17
    v_and_b32 v18, 3, v0
    v_lshl_add_u32 v17, v18, 3, v17
    s_lshl_b32 s35, s32, 7
    v_xor_b32 v7, s35, v17
    v_xor_b32 v8, 32, v7
    v_xor_b32 v9, 64, v7
    v_xor_b32 v10, 0x60, v7
    s_barrier''')
    e.run(dma(1))
    SP,GX,GW,T,BP=224,232,240,248,80
    e(f'''s_lshl_b32 s66, s26, 4
    s_add_u32 s66, s66, s27
    s_lshl_b32 s66, s66, 2
    s_add_u32 s66, s66, {WS_F}          ; F1 slot
    s_lshl_b32 s84, s26, 1
    s_add_u32 s84, s84, s33
    s_lshl_b32 s84, s84, 4
    s_add_u32 s84, s84, s27
    s_lshl_b32 s84, s84, 2
    s_add_u32 s84, s84, s34
    s_lshl_b32 s84, s84, 2
    s_add_u32 s84, s84, {WS_F+0x2000}     ; F2a slot
    s_add_u32 s3, s84, 0x2000            ; F2b slot
    s_and_b32 s80, s2, 31        ; head
    s_lshr_b32 s81, s2, 5        ; qb
    s_lshl_b32 s85, s81, 2
    s_add_u32 s85, s85, s31
    s_lshl_b32 s85, s85, 5
    s_add_u32 s85, s85, s80
    s_lshl_b32 s85, s85, 1
    s_add_u32 s85, s85, s32
    s_lshl_b32 s85, s85, 2
    s_add_u32 s85, s85, {WS_F+0x6000}     ; F3 slot
    s_lshl_b32 s67, s31, 8
    s_add_u32 s67, s67, s2
    s_mul_i32 s68, s67, 6554
    s_lshr_b32 s68, s68, 16          ; ks=u/10
    s_mul_i32 s69, s68, 10
    s_sub_u32 s69, s67, s69          ; np
    s_lshr_b32 s35, s68, 1
    s_and_b32 s36, s35, 1
    s_mul_i32 s35, s35, 3
    s_add_u32 s35, s35, s36
    s_and_b32 s36, s68, 1
    s_add_u32 s35, s35, s36          ; B1 row/32
    s_sub_u32 s37, s68, 32
    s_mul_i32 s37, s37, 3
    s_lshl_b32 s36, s36, 1
    s_sub_u32 s37, s37, s36
    s_add_u32 s37, s37, 2            ; B2 row/32
    s_cmp_lt_u32 s68, 32
    s_cselect_b32 s70, s35, s37
    s_lshl_b32 s70, s70, 5
    s_sub_u32 s71, s68, 48
    s_mul_i32 s71, s71, 40
    s_cmp_lt_u32 s68, 48
    s_cselect_b32 s20, s52, s44
    s_cselect_b32 s21, s53, s45
    s_mov_b32 s22, {640*1280}
    s_cselect_b32 s22, {1536*1280}, s22
    s_mov_b32 s23, 0x20000
    s_cselect_b32 s70, s70, s71
    s_cselect_b32 s76, 16, 20
    s_cselect_b32 s77, 8, 4
    s_cselect_b32 s78, 4, 8
    s_sub_u32 s71, s68, 64
    s_mul_i32 s71, s71, 160
    s_add_u32 s71, s71, 16
    s_cmp_lt_u32 s68, 64
    s_cselect_b32 s70, s70, s71
    s_cselect_b32 s76, s76, 0x50
    s_cselect_b32 s77, s77, 40
    s_cselect_b32 s78, s78, 20
    s_mul_i32 s78, s78, s32
    s_add_u32 s70, s70, s78
    s_mul_i32 s70, s70, 1280
    s_mul_i32 s78, s76, 1280
    s_lshl_b32 s71, s69, 7
    s_add_u32 s70, s70, s71
    s_lshl_b32 s79, s26, 2
    s_add_u32 s79, s79, s31
    s_lshl_b32 s79, s79, 7
    s_add_u32 s79, s79, {WS_G}
    s_mov_b32 s54, s76
    s_mov_b32 s55, s77
    s_mov_b32 s48, s58
    s_mov_b32 s49, s59
    s_mov_b32 s50, 256
    s_mov_b32 s51, 0x20000
    s_lshl_b32 s76, s69, 1
    s_add_u32 s76, s76, s32
    s_lshl_b32 s76, s76, 1
    s_add_u32 s77, s76, 1''')
    for r in (76,77):
        e(f'''s_mul_i32 s35, s{r}, 13108
        s_lshr_b32 s35, s35, 16
        s_mul_i32 s36, s35, 5
        s_sub_u32 s36, s{r}, s36
        s_mul_i32 s35, s35, 68
        s_add_u32 s35, s35, s68
        s_mul_i32 s35, s35, 5
        s_add_u32 s35, s35, s36
        s_lshl_b32 s35, s35, 10
        s_add_u32 s35, s35, {WS_WP}
        s_cmp_ge_u32 s67, 680
        s_cselect_b32 s{r}, 0x7ff00000, s35''')
    e(f'''s_lshr_b32 s35, s26, 1
    s_mul_i32 s35, s35, 480
    s_lshl_b32 s36, s27, 5
    s_add_u32 s35, s35, s36
    s_lshl_b32 s36, s32, 4
    s_add_u32 s35, s35, s36
    s_lshl_b32 s35, s35, 11
    s_and_b32 s36, s26, 1
    s_lshl_b32 s36, s36, 10
    s_add_u32 s35, s35, s36
    s_lshl_b32 s36, s31, 8
    s_add_u32 s35, s35, s36
    s_cmp_eq_u32 s27, 15
    s_cselect_b32 s46, 0x7ff00000, s35
    s_lshl_b32 s35, s26, 1
    s_add_u32 s35, s35, s33
    s_mul_i32 s35, s35, {PBS}
    s_and_b32 s36, s31, 1
    s_lshl_b32 s36, s36, 9
    s_add_u32 s35, s35, s36
    s_add_u32 s35, s35, {WS_AP}
    s_lshl_b32 s36, s27, 1
    s_add_u32 s36, s36, s32
    s_lshl_b32 s37, s36, 12
    s_add_u32 s47, s35, s37
    s_lshl_b32 s37, s36, 11
    s_add_u32 s29, s35, s37
    s_add_u32 s29, s29, {128*1024}''')
    def resets():
        e('''v_mov_b32 v11, 0
        v_mov_b32 v12, s84
        v_writelane_b32 v12, s3, 1
        v_writelane_b32 v12, s85, 2
        v_writelane_b32 v12, s66, 3
        s_cmp_eq_u32 s30, 0
        s_cselect_b64 exec, 15, 7''')
        e.vm('rst',f'buffer_store_dword v11, v12, s[12:15], 0 offen {SC}')
        e('s_mov_b64 exec, -1')
    GX,GW,Z,Z2=80,88,11,12
    def g_loads():
        return [lambda j=j:(e('v_lshlrev_b32 v10, 4, v0'),e.vm('gl',f'buffer_load_dwordx4 {vr(GX+4*j,4)}, v10, s[4:7], s71 offen offset:{1024*j}'),e.vm('gl',f'buffer_load_dwordx4 {vr(GW+4*j,4)}, v10, s[72:75], 0 offen offset:{1024*j}')) for j in range(2)]
    def g_finish():
        dpp=lambda d:f'v_add_f32_dpp v{Z}, v{Z}, v{Z} {d} row_mask:0xf bank_mask:0xf'
        L=[lambda:(e.wait(vm=['gl']),e(f'v_mov_b32 v{Z}, 0\nv_mov_b32 v{Z2}, 0\nv_cmp_gt_u32 vcc, 16, v0'))]
        L+=[f'v_dot2c_f32_bf16 v{Z}, v{GX+j}, v{GW+j}\nv_dot2c_f32_bf16 v{Z2}, v{GX+4+j}, v{GW+4+j}' for j in range(4)]
        L+=[f'v_cndmask_b32 v{Z2}, 0, v{Z2}, vcc\nv_add_f32 v{Z}, v{Z}, v{Z2}',dpp('quad_perm:[1,0,3,2]'),dpp('quad_perm:[2,3,0,1]'),dpp('row_half_mirror'),dpp('row_mirror'),
            f'v_readlane_b32 s35, v{Z}, 16\nv_readlane_b32 s36, v{Z}, 32\nv_readlane_b32 s37, v{Z}, 48',
            f'v_add_f32 v{Z}, s35, v{Z}\nv_add_f32 v{Z}, s36, v{Z}\nv_add_f32 v{Z}, s37, v{Z}\nv_mul_f32 v{Z}, 0xbfb8aa3b, v{Z}\nv_exp_f32 v{Z}, v{Z}',
            f'v_add_f32 v{Z}, 1.0, v{Z}\nv_rcp_f32 v{Z}, v{Z}',
            lambda:(e('s_mov_b64 exec, 1'),e.vm('pub1b',f'buffer_store_dword v{Z}, off, s[12:15], s79 {SC}'),e('s_mov_b64 exec, -1'))]
        return L
    def prefetch():
        return [f'''s_lshl_b32 s35, s25, 2
        s_add_u32 s35, s35, s34
        s_mul_i32 s35, s35, {5*3072}
        s_lshr_b32 s36, s24, 1
        s_mul_i32 s36, s36, 768
        s_add_u32 s35, s35, s36
        v_mul_u32_u24 v11, 43, v0
        v_lshrrev_b32 v11, 8, v11
        v_mul_u32_u24 v11, {3072-768}, v11
        v_lshl_add_u32 v11, v0, 7, v11''',
        lambda:(e('s_mov_b64 exec, 0x3fffffff'),e.vm('pf','buffer_load_dword v80, v11, s[16:19], s35 offen'),e('s_mov_b64 exec, -1')),
        f'''v_bfe_u32 v11, v0, 3, 1
        v_mul_u32_u24 v11, s54, v11
        v_bfe_u32 v12, v0, 2, 1
        v_mad_u32_u24 v11, v12, s55, v11
        v_and_b32 v12, 3, v0
        v_add_u32 v11, v11, v12
        v_mul_u32_u24 v11, 1280, v11
        v_mad_u32_u24 v11, v14, s78, v11''',
        lambda:(e('s_mov_b32 exec_hi, 0'),e.vm('pf','buffer_load_dword v80, v11, s[20:23], s70 offen'),e('s_mov_b32 exec_hi, -1'))]
    def pack_dma():
        return [f'''v_lshrrev_b32 v11, 5, v0
        v_bfe_u32 v12, v0, 3, 2
        v_mad_u32_u24 v11, v11, s55, v12
        v_mul_u32_u24 v11, 1280, v11''',f'''v_lshlrev_b32 v12, 1, v14
        v_and_b32 v2, 7, v0
        v_xor_b32 v12, v12, v2
        v_lshl_add_u32 v11, v12, 4, v11''',
        lambda:(e('s_mov_b32 m0, s60'),e.vm('pk','buffer_load_dwordx4 v11, s[20:23], s70 offen lds'))]+['']*P('pg',4)+[
        lambda:(e('s_add_u32 m0, m0, 1024\ns_add_u32 s70, s70, s78'),e.vm('pk','buffer_load_dwordx4 v11, s[20:23], s70 offen lds'))]
    def pack_finish():
        L=['''s_lshl_b32 s35, s31, 12
        v_and_b32 v11, 0xfff, v7
        v_add_u32 v11, s35, v11
        v_xor_b32 v12, 32, v11
        v_lshlrev_b32 v5, 4, v0''']
        for u in range(2): L.append(lambda u=u:[e.ds(('pk',u),f'ds_read_b64_tr_b16 {vr(80+4*u+2*h,2)}, v{11+u} offset:{h*2048}') for h in range(2)])
        for u in range(2): L+=['']*5; L.append(lambda u=u:(e.wait(ds=[('pk',u)]),e.vm('pub1b',f'buffer_store_dwordx4 {vr(80+4*u,4)}, v5, s[12:15], s{76+u} offen {SC}')))
        return L
    def dmaB_addr():
        return [f'''s_lshr_b32 s35, s34, 1
        s_lshl_b32 s35, s35, 5
        s_lshl_b32 s36, s32, 2
        s_add_u32 s35, s35, s36
        s_mul_i32 s35, s35, 3072
        s_mul_i32 s36, s27, 192
        s_add_u32 s35, s35, s36
        s_and_b32 s36, s27, 1
        s_lshl_b32 s37, s36, 6
        s_add_u32 s37, s37, s35          ; B1
        s_lshl_b32 s36, s36, 7
        s_sub_u32 s35, s35, s36
        s_add_u32 s35, s35, 128          ; B2
        v_lshrrev_b32 v11, 3, v0
        v_and_b32 v12, 4, v11
        v_add_u32 v11, v11, v12          ; 8(rl>>2)+(rl&3)
        v_mul_u32_u24 v11, 3072, v11
        v_and_b32 v12, 7, v0
        v_lshlrev_b32 v4, 1, v14
        v_xor_b32 v12, v12, v4
        v_lshl_add_u32 v11, v12, 4, v11
        v_add_u32 v1, s37, v11
        v_add_u32 v2, {16*3072}, v1''',f'''v_lshrrev_b32 v11, 2, v0
        v_and_b32 v12, 12, v11
        v_add_u32 v11, v11, v12
        v_mul_u32_u24 v11, 3072, v11
        v_and_b32 v12, 3, v0
        v_and_b32 v4, 2, v4
        v_xor_b32 v12, v12, v4
        v_lshl_add_u32 v11, v12, 4, v11
        v_add_u32 v3, s35, v11''']
    rdB=f'''v_lshrrev_b32 v11, 2, v0
    v_and_b32 v12, 3, v0
    v_lshlrev_b32 v12, 3, v12
    v_lshl_add_u32 v9, v11, 6, v12
    v_lshl_add_u32 v12, v11, 7, v12
    v_bfe_u32 v11, v0, 3, 2
    s_lshl_b32 s35, s32, 1
    v_xor_b32 v11, s35, v11
    v_lshl_add_u32 v7, v11, 5, v12
    v_xor_b32 v8, 32, v7'''
    rdB2=f'''v_and_b32 v11, 1, v14
    v_xor_b32 v11, s32, v11
    v_lshl_add_u32 v9, v11, 5, v9
    v_add_u32 v9, 49152, v9
    v_lshlrev_b32 v5, 4, v13
    v_lshl_add_u32 v5, v14, 11, v5
    v_lshlrev_b32 v6, 5, v13
    v_and_b32 v12, 1, v14
    v_lshl_add_u32 v6, v12, 4, v6
    v_lshrrev_b32 v12, 1, v14
    v_lshl_add_u32 v6, v12, 10, v6'''
    F=[]
    for s in range(20):
        for kk in range(2 if s<10 else 4):
            for t in range(4 if s<15 else 2): F.append((s,kk,t))
    def reads(f):
        s,kk,t=F[f]; o=(s%5&1)*SLOT; L=[]
        for h in range(2):
            d=vr(WR(f)+2*h,2)
            if s<10: L.append(f'ds_read_b64_tr_b16 {d}, v{7+t} offset:{o+16384+kk*8192+h*4096}')
            elif s<15: L.append(f'ds_read_b64_tr_b16 {d}, v{7+(t>>1)} offset:{o+(kk>>1)*16384+(t&1)*8192+(kk&1)*4096+h*2048}')
            else: L.append(f'ds_read_b64_tr_b16 {d}, v9 offset:{((s-15)&3)*16384+(kk>>1)*8192+t*4096+(kk&1)*2048+h*1024}')
        if s<10 and t==0: L=[f'ds_read_b128 {vr(XR(2*s+kk,pt),4)}, v{5+kk} offset:{o+pt*2048}' for pt in range(2)]+L
        return L
    def mf(f,pt):
        s,kk,t=F[f]; ks=2*s+kk if s<10 else 4*(s%5)+kk
        a=vr(acc(pt,t+(4 if s>=15 else 0)),4)
        return f'v_mfma_f32_16x16x32_bf16 {a}, {vr(WR(f),4)}, {vr(XR(ks,pt),4)}, {a if ks else 0}'
    def silu(T,tag,sreg,off):
        g=acc(0,2*T); u=acc(0,2*T+1); L=[]
        for i in range(8): L.append(f'v_mul_f32 v{u+i}, v{g+i}, v{u+i}\nv_mul_f32 v{g+i}, 0xbfb8aa3b, v{g+i}')
        for i in range(8): L.append(f'v_exp_f32 v{g+i}, v{g+i}')
        for i in range(8): L.append(f'v_add_f32 v{g+i}, 1.0, v{g+i}')
        for i in range(8): L.append(f'v_rcp_f32 v{g+i}, v{g+i}')
        for i in range(8): L.append(f'v_mul_f32 v{g+i}, v{g+i}, v{u+i}')
        for i in range(4): L.append(f'v_cvt_pk_bf16_f32 v{u+i}, v{g+2*i}, v{g+2*i+1}')
        L=['\n'.join(L[i:i+4]) for i in range(0,len(L),4)]
        L.append(lambda:(e(f'v_permlane16_swap_b32 v{u}, v{u+2}\nv_permlane16_swap_b32 v{u+1}, v{u+3}'),e.vm(tag,f'buffer_store_dwordx4 {vr(u,4)}, v6, s[12:15], s{sreg} offen offset:{off} {SC}')))
        return L
    extra=[]
    AQ=96
    def kv_loads():
        L=[f'''s_lshr_b32 s35, s34, 1
        s_add_u32 s35, s35, s81
        s_add_u32 s35, s35, 7
        s_and_b32 s35, s35, 7
        s_mul_i32 s35, s35, 480
        s_mul_i32 s82, s80, 5
        s_add_u32 s37, s33, 1
        s_mul_i32 s37, s37, 160
        s_add_u32 s35, s35, s82
        s_add_u32 s35, s35, s37
        s_lshl_b32 s35, s35, 11
        s_lshl_b32 s37, s32, 10
        s_add_u32 s35, s35, s37
        s_mul_i32 s37, s33, {5*PS}
        s_lshl_b32 s38, s34, 10
        s_add_u32 s52, s37, s38
        s_mov_b32 s53, s35
        v_lshlrev_b32 v1, 4, v0''']
        for i in range(5): L.append(lambda i=i:(e(f's_add_u32 m0, s52, {i*PS}'),e.vm('kv',f'buffer_load_dwordx4 v1, s[12:15], s53 offen {SC} lds'),e('s_add_u32 s53, s53, 2048')))
        L.append(f'''s_mul_i32 s38, s81, 480
        s_add_u32 s38, s38, s82
        s_lshl_b32 s38, s38, 11
        s_lshl_b32 s39, s30, 8
        s_add_u32 s38, s38, s39
        s_add_u32 s39, s38, 8192
        v_and_b32 v2, 31, v0       ; qq
        v_lshrrev_b32 v3, 5, v0    ; h
        v_lshlrev_b32 v11, 3, v2
        v_lshl_add_u32 v12, v3, 12, v11''')
        L.append(lambda:(e.vm('kv',f'buffer_load_dwordx2 {vr(AQ,2)}, v12, s[12:15], s38 offen {SC}'),e.vm('kv',f'buffer_load_dwordx2 {vr(AQ+2,2)}, v12, s[12:15], s38 offen offset:2048 {SC}')))
        L.append(lambda:e.vm('kv',f'buffer_load_dwordx2 {vr(AQ+4,2)}, v11, s[12:15], s39 offen {SC}'))
        L.append(lambda:(e(f'''v_mov_b32 v104, 0x3f803f80
        v_mov_b32 v105, 0x3f803f80
        s_lshl_b32 s38, s30, 9
        v_lshl_add_u32 v11, v0, 3, s38'''),e.ds('ones',f'ds_write_b64 v11, v[104:105] offset:{10*PS}'),e('v_mov_b32 v103, 0\nv_lshlrev_b32 v11, 2, v0'),e.ds('ones',f'ds_write_b32 v11, v103 offset:{LFLAG}')))
        return L
    cntload=f'buffer_load_dword v4, v10, s[48:51], 0 offen {SC}'
    f1sub=f'buffer_load_dword v4, v10, s[12:15], s83 offen {SC}'
    f1all=f'buffer_load_dwordx4 v[112:115], v1, s[12:15], s83 offen {SC}'
    w0=lambda tag,body:f's_cmp_lg_u32 s30, 0\ns_cbranch_scc1 {tag}\n{body}\n{tag}:'
    fstore=lambda sreg,val,r:f'v_mov_b32 v{r}, {val}\ns_mov_b64 exec, 1\nbuffer_store_dword v{r}, off, s[12:15], s{sreg} {SC}\ns_mov_b64 exec, -1'
    e.flag=lambda sreg:e(fstore(sreg,1,12))
    slow=[]
    P=lambda k,d:int(var.split(k+'=')[1].split('_')[0].split()[0]) if k+'=' in var else d
    e.P=P
    PUB1=P('p1',13); KVB=P('kv',15); PUB1B=P('p1b',17)
    kv=kv_loads()
    def boundary(s):
        nonlocal extra,slow
        e.run(extra); extra=[]
        if s in (14,15): e.run(slow); slow=[]
        tags=[f'D{s}']
        if s==5: tags.append('rst')
        if s==14: tags.append('pk')
        if s==PUB1: tags.append('pub1')
        if s==PUB1B: tags.append('pub1b')
        e.wait(vm=tags)
        if s in (13,KVB):
            tg='cnt' if s==13 else 'f1'
            n=len(e.vq)-1-e.vq.index(tg) if tg in e.vq else 63
            e(f's_cmp_lg_u32 s30, 0\ns_cbranch_scc1 NOCHK{s}\ns_waitcnt vmcnt({len([x for x in e.vq[::-1][:n] if x not in e.mark])})')
            if s==13: check(cntload,[4],64,15)
            else: check(f1sub,[4],1,-1)
            e(f'NOCHK{s}:')
        e('s_barrier')
        if s==0: stamp(1)
        else: fine()
        if s==10: e(rdB); extra.append(rdB2)
        elif s==19: e('v_add_u32 v9, 0x10000, v9')
        elif 0<s<15 and s%5 in (0,2,4):
            d=65536 if s%5 else -131072&0xffffffff
            for r in (range(5,11) if s<10 else (7,8)): e(f'v_add_u32 v{r}, {hex(d)}, v{r}')
        if s==PUB1: e(w0('NOF1',fstore(66,1,12)))
        if s==PUB1B: e(w0('NOF1B',fstore(66,3,4)))
        if s==7: extra+=dmaB_addr()
        if s==KVB-1: extra+=['']*P('fd',8 if s<15 else 2)+[lambda:(e(f'''s_lshl_b32 s35, s81, 5
            s_sub_u32 s35, s35, 32
            v_add_u32 v10, s35, v0
            v_and_b32 v10, 0xff, v10
            v_lshlrev_b32 v10, 2, v10
            s_mov_b32 s83, {WS_F}
            '''+w0('NOP1',f1sub)),e.vq.append('f1'))]
        for d in {0:[2,3],12:[],13:[15],14:[16,17],15:[18,19]}.get(s,[s+3] if s<12 else []): extra=dma(d)+extra if s==KVB-1 and d%2==0 else extra+dma(d)
        if s==1: extra.append(resets)
        if s==P('pf',99): extra+=prefetch()
        if s==5: extra.append('s_and_b32 s35, s2, 3\ns_lshl_b32 s35, s35, 6\n'+w0('NOCNT',f'v_mov_b32 v11, 1\ns_mov_b64 exec, 1\nbuffer_atomic_add v11, off, s[48:51], s35 {SC}\ns_mov_b64 exec, -1'))
        if s==12: extra+=[lambda:(e('v_lshlrev_b32 v10, 6, v0\n'+w0('NOC',cntload)),e.vq.append('cnt'))]+pack_dma()
        if s==P('ps',14): slow+=['']*P('pd',0)+pack_finish()
        if KVB==15:
            if s==15: extra+=kv[:3]
            if s==16: extra+=[kv[3],'','',kv[4],'','',kv[5]]
            if s==17: extra+=kv[6:]
        else:
            if s==16: extra+=[kv[0],kv[1],'',kv[2],'',kv[3],'',kv[4]]
            if s==17: extra+=[kv[5],kv[6],'',kv[7],'',kv[8],kv[9]]
        if s==18:
            from mega2 import setup
            slow+=setup()
    LA=6
    if 'nopg' not in var:
        for r in range(P('pr',1)):
            for i in range(8): e(f's_cmp_eq_u32 s30, {i}\ns_cbranch_scc1 PG{i}')
        e('WARMED:')
    boundary(0)
    for f in range(LA):
        for x in reads(f): e.ds(f,x)
        if extra: e.run([extra.pop(0)])
    for f in range(len(F)):
        n=f+LA; r=[]
        if n<len(F):
            if F[n][1:]==(0,0): boundary(F[n][0])
            r=reads(n)
        e.wait(ds=[f])
        e(mf(f,0))
        for x in r[:len(r)//2]: e.ds(n,x)
        if slow: e.run([slow.pop(0)])
        e(mf(f,1))
        for x in r[len(r)//2:]: e.ds(n,x)
        if extra: e.run([extra.pop(0)])
        if f==79:
            stamp(2)
            e('s_lshl_b32 s35, s27, 1\ns_add_u32 s35, s35, s32\ns_cmp_eq_u32 s35, 30\ns_cbranch_scc1 GATE\nGATED:')
            e.ool.append(f'''GATE:
            s_nop 7
            v_permlane32_swap_b32 v49, v50
            v_permlane32_swap_b32 v53, v54
            v_add_f32 v48, v48, v50
            v_add_f32 v49, v52, v54
            v_mul_f32 v48, 0xbfb8aa3b, v48
            v_mul_f32 v49, 0xbfb8aa3b, v49
            v_exp_f32 v48, v48
            v_exp_f32 v49, v49
            v_lshlrev_b32 v50, 3, v0
            v_add_f32 v48, 1.0, v48
            v_add_f32 v49, 1.0, v49
            v_rcp_f32 v48, v48
            v_rcp_f32 v49, v49
            s_mov_b64 exec, 0xffff
            buffer_store_dwordx2 v[48:49], v50, s[12:15], s79 offen {SC}
            s_mov_b64 exec, -1
            s_branch GATED''')
            for t in range(4):
                R=80+4*t
                for pt in range(2):
                    a=acc(pt,t); e(f'v_cvt_pk_bf16_f32 v{R+2*pt}, v{a}, v{a+1}\nv_cvt_pk_bf16_f32 v{R+2*pt+1}, v{a+2}, v{a+3}')
                slow+=[lambda R=R:(e.vm('pub1',f'buffer_store_dwordx4 {vr(R,4)}, v5, s[12:15], s46 offen {SC}'),e('s_add_u32 s46, s46, 8192'))]+['']*(P('qs',6)-1)
        if f==160:
            a,b=silu(0,'pub2a',47,0),silu(1,'pub2a',47,2048)
            slow+=a[:-1]+b[:-1]+[a[-1],b[-1]] if 'hs' in var else a+b
    e.run(extra); e.run(slow)
    e.wait(vm=['kv'])
    e('s_waitcnt lgkmcnt(0)\ns_barrier\ns_setprio 2'); e.lq.clear()
    stamp(3)
    e.run(silu(2,'pub2b',29,0))
    from mega2 import tail
    tail(e,stamp,check,var)
    e('END:\ns_endpgm')
    for x in e.ool: e(x)
    return ('gated_mix__sliding_block__swiglu_ffn__prompt_kernel',e.text() if 'nopg' in var else paginate(e.text(),8),256,512,163840,256)
if __name__=='__main__':
    k=gen('stamp' in sys.argv,' '.join(sys.argv[2:]))
    s=module([k])
    if 'single' in sys.argv: s=s.replace(f'; @launch kernel={k[0]} ','; @launch ')
    open(sys.argv[1],'w').write(s)
```
